```python
import torch

def _softmax(x, axis=-1):
    return torch.softmax(x, dim=axis)

def _gelu(x):
    return torch.nn.functional.gelu(x, approximate='tanh')

def _silu(x):
    return torch.nn.functional.silu(x)

def _sigmoid(x):
    return torch.sigmoid(x)

def _layernorm(x, axis=-1, eps=1e-05):
    m = x.mean(dim=axis, keepdim=True)
    v = x.var(dim=axis, keepdim=True, unbiased=False)
    return (x - m) / torch.sqrt(v + eps)

def _scatter_add(tgt, idx, src, axis=0):
    return tgt.clone().index_add_(axis, idx, src)

def _segment_sum(src, seg, n):
    out = torch.zeros((n,) + src.shape[1:], dtype=src.dtype)
    return out.index_add_(0, seg, src)

def _pad(x, pw):
    flat = tuple((v for pair in reversed(pw) for v in pair))
    return torch.nn.functional.pad(x, flat)
kernel_name = 'adaLN_cond__gqa_block_cached__swiglu_ffn__decode'

def setup_inputs():

    _w = lambda a: (lambda t: t.to(torch.bfloat16) if t.is_floating_point() else t)(torch.as_tensor(a))

    def _A_setup():
        B, Sq, D = (1, 1, 448)
        Hq, Hkv, Sk, Dh = (16, 8, 32768, 256)
        assert Hq % Hkv == 0, (Hq, Hkv)
        return {'x': _w((lambda *s: torch.randn(*s, dtype=torch.bfloat16) * 0.1)(B, Sq, D)), 'k_cache': _w((lambda *s: torch.randn(*s, dtype=torch.bfloat16) * 0.8)(B, Hkv, Sk, Dh)), 'v_cache': _w((lambda *s: torch.randn(*s, dtype=torch.bfloat16) * 0.8)(B, Hkv, Sk, Dh)), 'wq': _w((lambda *s: torch.randn(*s, dtype=torch.bfloat16) * 0.8)(D, Hq * Dh) * D ** (-0.5)), 'wo': _w((lambda *s: torch.randn(*s, dtype=torch.bfloat16) * 0.8)(Hq * Dh, D) * (Hq * Dh) ** (-0.5))}
    _A_in = _A_setup()

    def _B_setup():
        B, S, D, F = (1, 1, 448, 1792)
        return {'x': _w((lambda *s: torch.randn(*s, dtype=torch.bfloat16) * 0.1)(B, S, D)), 'w_gate': _w((lambda *s: torch.randn(*s, dtype=torch.bfloat16) * 0.1)(D, F)), 'w_up': _w((lambda *s: torch.randn(*s, dtype=torch.bfloat16) * 0.1)(D, F)), 'w_down': _w((lambda *s: torch.randn(*s, dtype=torch.bfloat16) * 0.1)(F, D))}
    _B_in = _B_setup()
    return {'A_x': _A_in['x'], 'A_k_cache': _A_in['k_cache'], 'A_v_cache': _A_in['v_cache'], 'A_wq': _A_in['wq'], 'A_wo': _A_in['wo'], 'B_x': _B_in['x'], 'B_w_gate': _B_in['w_gate'], 'B_w_up': _B_in['w_up'], 'B_w_down': _B_in['w_down'], 'c': _w((lambda *s: torch.randn(*s, dtype=torch.bfloat16) * 0.4)(1, 448) * 8.0), 'w_mod': _w((lambda *s: torch.randn(*s, dtype=torch.bfloat16) * 0.4)(448, 6 * 448) * 448 ** (-0.5) * 8.0)}

def reference(A_x, A_k_cache, A_v_cache, A_wq, A_wo, B_x, B_w_gate, B_w_up, B_w_down, c, w_mod):

    def _A_ref(x, k_cache, v_cache, wq, wo):
        B, Sq, D = x.shape
        Hq, Dh = (16, 256)
        Hkv = k_cache.shape[1]
        rep = Hq // Hkv
        q = (lambda x, *d: x.permute(*d))((x @ wq).reshape(B, Sq, Hq, Dh), 0, 2, 1, 3)
        k = (lambda x, n, axis: torch.repeat_interleave(x, n, dim=axis))(k_cache, rep, axis=1)
        v = (lambda x, n, axis: torch.repeat_interleave(x, n, dim=axis))(v_cache, rep, axis=1)
        scores = torch.einsum('bhqd,bhkd->bhqk', q, k) * Dh ** (-0.5)
        p = _softmax(scores, axis=-1)
        o = torch.einsum('bhqk,bhkd->bhqd', p, v)
        return (lambda x, *d: x.permute(*d))(o, 0, 2, 1, 3).reshape(B, Sq, Hq * Dh) @ wo

    def _B_ref(x, w_gate, w_up, w_down):
        g = _silu(x @ w_gate)
        u = x @ w_up
        return g * u @ w_down
    x = A_x
    mod = (_silu(c) @ w_mod).reshape(c.shape[0], 6, 1, -1)
    sa, ca, ga, sb, cb, gb = (mod[:, 0].clone(), mod[:, 1].clone(), mod[:, 2].clone(), mod[:, 3].clone(), mod[:, 4].clone(), mod[:, 5].clone())
    h = _layernorm(x, axis=-1) * (1 + ca) + sa
    x = x + ga * _A_ref(h, A_k_cache, A_v_cache, A_wq, A_wo)
    h = _layernorm(x, axis=-1) * (1 + cb) + sb
    x = x + gb * _B_ref(h, B_w_gate, B_w_up, B_w_down)
    return x
```

```python
import re

def regs_of(tok):
    tok = tok.strip()
    tok = re.sub(r'^-', '', tok)
    m = re.match(r'^abs\((.*)\)$', tok)
    if m: tok = m.group(1)
    m = re.match(r'^\|(.*)\|$', tok)
    if m: tok = m.group(1)
    m = re.match(r'^([vsa])(\d+)$', tok)
    if m: return [(m.group(1), int(m.group(2)))]
    m = re.match(r'^([vsa])\[(\d+):(\d+)\]$', tok)
    if m: return [(m.group(1), i) for i in range(int(m.group(2)), int(m.group(3))+1)]
    if tok == 'vcc': return [('s', 'vcc')]
    if tok == 'm0': return [('s', 'm0')]
    if tok == 'exec': return [('s', 'exec')]
    return []

TRANS = ('v_exp_f32', 'v_log_f32', 'v_rcp_f32', 'v_rsq_f32', 'v_sqrt_f32', 'v_sin_f32', 'v_cos_f32')

class Ins:
    def __init__(self, text):
        self.text = text
        t = text.split(';')[0].strip()
        self.op = t.split()[0]
        rest = t[len(self.op):].strip()
        parts = [p.strip() for p in re.split(r',(?![^\[]*\])', rest)] if rest else []
        self.mods = ''
        if parts:
            last = parts[-1].split(None, 1)
            if len(last) > 1: self.mods = last[1]
            parts[-1] = last[0] if last else ''
        self.ops = parts
        op = self.op
        self.valu = op.startswith('v_') and not op.startswith('v_mfma')
        self.mfma = op.startswith('v_mfma')
        self.vmem = op.startswith('buffer_') or op.startswith('global_')
        self.ds = op.startswith('ds_')
        self.salu = op.startswith('s_')
        self.dpp = '_dpp' in op
        self.perml = op.startswith('v_permlane')
        self.rdl = op.startswith('v_readlane') or op.startswith('v_readfirstlane')
        self.trans = any(op.startswith(x) for x in TRANS)
        self.dot = op.startswith('v_dot')
        R = [regs_of(p) for p in parts]
        flat = lambda l: [x for y in l for x in y]
        self.defs, self.uses = [], []
        if self.mfma:
            self.defs = R[0]; self.uses = flat(R[1:]); self.srcc = R[3]; self.srcab = R[1] + R[2]
        elif self.valu:
            if self.perml:
                self.defs = R[0] + R[1]; self.uses = R[0] + R[1]
            elif op.startswith('v_cmp'):
                self.defs = R[0]; self.uses = flat(R[1:])
            elif '_co_' in op:
                self.defs = R[0] + R[1]; self.uses = flat(R[2:])
            else:
                self.defs = R[0]; self.uses = flat(R[1:])
                if op.startswith('v_dot2c') or op.startswith('v_fmac') or op.startswith('v_writelane') or self.dpp:
                    self.uses = self.uses + R[0]
        elif self.vmem:
            self.lds = bool(re.search(r'\blds\b', self.mods)) or '_lds_' in op
            if 'load' in op and not self.lds:
                self.defs = R[0]; self.uses = flat(R[1:])
            else:
                self.uses = flat(R)
                if self.lds: self.uses.append(('s', 'm0'))
            self.wide_store = ('store' in op) and (op.endswith('x4') or op.endswith('x3'))
            self.sdata = R[0] if 'store' in op and op.startswith('buffer_') else []
        elif self.ds:
            if 'read' in op or 'rtn' in op or 'permute' in op or 'swizzle' in op:
                self.defs = R[0]; self.uses = flat(R[1:])
            else:
                self.uses = flat(R)
        elif self.salu:
            if op.startswith('s_cmp') or op.startswith('s_cbranch') or op.startswith('s_branch') or op in ('s_waitcnt', 's_barrier', 's_nop', 's_sleep', 's_endpgm', 's_setprio', 's_setpc_b64'):
                self.uses = flat(R)
            else:
                self.defs = R[0] if R else []; self.uses = flat(R[1:])
        self.states = 1
        if op == 's_nop': self.states = int(parts[0], 0) + 1

def need(prod, cons):
    n = 0
    pd = set(prod.defs); cu = set(cons.uses); cd = set(cons.defs)
    vd = {x for x in pd if x[0] == 'v'}; sd = {x for x in pd if x[0] == 's'}
    if prod.valu:
        if vd & cu:
            if cons.dpp or cons.perml or cons.mfma: n = max(n, 2)
            if cons.rdl: n = max(n, 1)
            if prod.trans and cons.valu: n = max(n, 1)
        if prod.dot and (vd & (cu | cd)):
            same = cons.op.replace('_e32', '') == prod.op.replace('_e32', '')
            if same:
                ab = set(x for p in cons.ops[1:3] for x in regs_of(p))
                if vd & ab: n = max(n, 3)
            else: n = max(n, 3)
        if sd & cu:
            if cons.vmem: n = max(n, 5)
            elif cons.rdl or cons.op.startswith('v_writelane'): n = max(n, 4)
            elif cons.valu or cons.mfma: n = max(n, 2)
            elif cons.salu: n = max(n, 1)
    if prod.mfma:
        p = 8 if '16x16x32' in prod.op else 12
        if cons.mfma:
            if vd & set(cons.srcab): n = max(n, p)
            if vd & set(cons.srcc) and set(cons.srcc) != vd: n = max(n, p)
            if (vd & cd) and set(cons.srcc) != vd: n = max(n, p)
        elif vd & (cu | cd): n = max(n, p)
        if cons.valu and set(prod.srcc) & cd: n = max(n, 3 if p == 8 else 7)
    if prod.salu and ('s', 'm0') in pd and cons.vmem and getattr(cons, 'lds', False): n = max(n, 1)
    if prod.vmem and getattr(prod, 'wide_store', False) and set(prod.sdata) & cd: n = max(n, 2)
    return n

class Asm:
    def __init__(self):
        self.lines = []
        self.hist = []
        self.nnop = 0
    def __call__(self, text):
        for t in text.split('\n'):
            t = t.strip()
            if t: self.emit(t)
    def label(self, name):
        self.lines.append(name + ':')
    def comment(self, c):
        self.lines.append('    ; ' + c)
    def raw(self, t):
        self.lines.append(t)
    def emit(self, text):
        if text.endswith(':'):
            self.label(text[:-1]); return
        if text.startswith(';'):
            self.lines.append('    ' + text); return
        ins = Ins(text)
        dist = 0; pad = 0
        for p in reversed(self.hist):
            n = need(p, ins)
            if n > dist: pad = max(pad, n - dist)
            dist += p.states
            if dist >= 20: break
        if pad:
            nop = Ins('s_nop %d' % (pad-1))
            self.lines.append('    s_nop %d' % (pad-1)); self.hist.append(nop); self.nnop += 1
        self.lines.append('    ' + text)
        self.hist.append(ins)
        if len(self.hist) > 40: self.hist = self.hist[-24:]
    def text(self):
        return '\n'.join(self.lines) + '\n'
```

```python
import sys, os
sys.path.insert(0, os.path.dirname(os.path.abspath(__file__)))
from asmlib import Asm

REF = 'adaLN_cond__gqa_block_cached__swiglu_ffn__decode.s.ref'
KNAME = 'adaLN_cond__gqa_block_cached__swiglu_ffn__decode_kernel'

WS_EPOCH = 0x0
WS_MOD = 0x1000
WS_Q = 0x4000
WS_ML = 0x8000
WS_ATT = 0x10000
WS_DN = 0x17000
WS_DN_END = WS_DN + 56*1792
WS_PART = 0x40000
WS_DBG = 0x100000
WS_SIZE = 0x200000
L_CNT = 0
L_QV = 256
L_AV = 2048
L_ACC = 6144
L_RED = 14336
L_ACTV = 22528
L_WBUF = 24576
L_UP = L_WBUF + 28672 + 32
L_DNW = L_WBUF + 2*28672 + 64
L_TOTAL = L_DNW + 28672

LOG2E = 1.4426950408889634
import struct
def fhex(x): return '0x%08x' % struct.unpack('<I', struct.pack('<f', x))[0]
DPPM = 'row_mask:0xf bank_mask:0xf'
GUARD = 1 << 21


class Gen:
    def __init__(self, D=6, catchup=1, prof=False, nslots=29, ntkv='nt', ntw='nt', expper=4):
        self.a = Asm()
        self.D = D; self.catchup = catchup; self.prof = prof; self.nslots = nslots
        self.ntkv = ntkv; self.ntw = ntw; self.expper = expper
        self.uid = 0

    def lab(self, base):
        self.uid += 1
        return 'L_%s_%d' % (base, self.uid)

    def stamp(self, i):
        if self.prof: self.a('s_memrealtime s[%d:%d]' % (70+2*i, 71+2*i))

    def srd(self, base, lo, size):
        a = self.a
        a('s_mov_b32 s%d, s%d' % (base, lo)); a('s_mov_b32 s%d, s%d' % (base+1, lo+1))
        a('s_mov_b32 s%d, 0x%x' % (base+2, size)); a('s_mov_b32 s%d, 0x20000' % (base+3))

    def guard(self, back):
        a = self.a
        a('s_add_u32 s60, s60, 1'); a('s_cmp_lt_u32 s60, 0x%x' % GUARD); a('s_cbranch_scc1 %s' % back)
        a('s_branch L_exit')

    def allreduce(self, x, t, op='v_add_f32'):
        a = self.a
        for r in (8, 4, 2, 1):
            a('%s_dpp v%d, v%d, v%d row_ror:%d %s' % (op, x, x, x, r, DPPM))
        self.xrows(x, t, op)

    def xrows(self, x, t, op):
        a = self.a
        a('v_mov_b32 v%d, v%d' % (t, x)); a('v_permlane16_swap_b32 v%d, v%d' % (x, t)); a('%s v%d, v%d, v%d' % (op, x, x, t))
        a('v_mov_b32 v%d, v%d' % (t, x)); a('v_permlane32_swap_b32 v%d, v%d' % (x, t)); a('%s v%d, v%d, v%d' % (op, x, x, t))

    def unpack8(self, dst, src):
        a = self.a
        for i in range(4):
            a('v_lshlrev_b32 v%d, 16, v%d' % (dst+2*i, src+i))
            a('v_and_b32 v%d, 0xffff0000, v%d' % (dst+2*i+1, src+i))

    def entry(self):
        a = self.a
        a('s_cmp_ge_u32 s2, 256'); a('s_cbranch_scc1 L_end')
        a('s_load_dwordx16 s[16:31], s[0:1], 0')
        a('s_load_dwordx8 s[32:39], s[0:1], 64')
        a('s_load_dwordx2 s[8:9], s[0:1], 104')
        if self.prof:
            for i in range(70, 102): a('s_mov_b32 s%d, 0' % i)
        self.stamp(0)
        a('v_lshrrev_b32 v1, 6, v0')
        a('v_and_b32 v3, 63, v0')
        a('v_readfirstlane_b32 s3, v1')
        a('s_and_b32 s4, s2, 7')
        a('s_lshr_b32 s5, s2, 3')
        a('s_mov_b32 s10, 0x%x' % WS_SIZE); a('s_mov_b32 s11, 0x20000')
        a('s_mov_b32 s60, 0')
        a('s_cmp_ge_u32 s3, 4'); a('s_cbranch_scc1 L_H')

    def spath(self):
        a = self.a; D = self.D
        VOFF, VM, VL, LANE = 0, 1, 2, 3
        T = [4, 5, 6, 7]
        QX, QY = 8, 16
        ACC0, ACC1, AA, AB = 8, 12, 16, 20
        SLOT0 = 24
        a('v_lshrrev_b32 v4, 4, v3'); a('v_lshlrev_b32 v4, 9, v4')
        a('v_and_b32 v5, 15, v3'); a('v_lshlrev_b32 v5, 4, v5')
        a('s_lshl_b32 s6, s3, 12'); a('s_lshl_b32 s7, s5, 14'); a('s_add_u32 s6, s6, s7')
        a('v_add3_u32 v0, v4, v5, s6')
        a('s_lshl_b32 s6, s4, 24')
        a('s_mov_b32 s7, s6')
        a('v_mov_b32 v1, 0xff800000'); a('v_mov_b32 v2, 0')
        a('s_waitcnt lgkmcnt(0)')
        self.srd(40, 18, 1 << 27); self.srd(44, 20, 1 << 27)
        free = [SLOT0 + 8*i for i in range(self.nslots)]
        gslot = {}; score = {}; spool = []
        vmops = []
        landed = [0]

        def wait_for(n_out):
            n_out = max(n_out, 0)
            if len(vmops) - landed[0] > n_out:
                a('s_waitcnt vmcnt(%d)' % n_out)
                landed[0] = len(vmops) - n_out

        def is_landed(g): return ('g', g, 1) in vmops[:landed[0]]

        def issue(g):
            s = free.pop(0); gslot[g] = s
            if g == 64: a('s_mov_b32 s6, s7')
            elif g % 2 == 0 and g: a('s_add_u32 s6, s6, 0x80000')
            srd = 's[40:43]' if g < 64 else 's[44:47]'
            for u in range(2):
                a('buffer_load_dwordx4 v[%d:%d], v0, %s, s6 offen offset:%d %s' % (s+4*u, s+4*u+3, srd, (g % 2)*2048 + u*256, self.ntkv))
                vmops.append(('g', g, u))

        def kwork(p):
            s0, s1 = gslot[2*p], gslot[2*p+1]
            ch = [(T[0], s0, QX), (T[1], s0, QY), (T[2], s1, QX), (T[3], s1, QY)]
            for i in range(8):
                for (t, s, q) in ch:
                    if i == 0: a('v_dot2_f32_bf16 v%d, v%d, v%d, 0' % (t, s, q))
                    else: a('v_dot2c_f32_bf16 v%d, v%d, v%d' % (t, s+i, q+i))
            a('v_add_f32_dpp v%d, v%d, v%d row_ror:8 %s' % (T[0], T[1], T[0], DPPM))
            a('v_add_f32_dpp v%d, v%d, v%d row_ror:8 %s' % (T[2], T[3], T[2], DPPM))
            for m in ('row_half_mirror', 'quad_perm:[1,0,3,2]', 'quad_perm:[2,3,0,1]'):
                for t in (T[0], T[2]):
                    a('v_add_f32_dpp v%d, v%d, v%d %s %s' % (t, t, t, m, DPPM))
            if not spool:
                spool.extend(range(s0, s0+8)); free.append(s1)
            else:
                free.append(s0); free.append(s1)
            r0, r1 = spool.pop(0), spool.pop(0)
            score[2*p], score[2*p+1] = r0, r1
            a('v_cvt_pk_bf16_f32 v%d, 0, v%d' % (r0, T[0]))
            a('v_cvt_pk_bf16_f32 v%d, 0, v%d' % (r1, T[2]))
            a('v_max3_f32 v%d, v%d, v%d, v%d' % (VM, VM, r0, r1))

        def maxwork():
            self.xrows(VM, T[0], 'v_max_f32')
            a('s_mov_b32 s48, %s' % fhex(LOG2E/16.0))
            a('v_mul_f32 v%d, s48, v%d' % (VM, VM))
            a('v_and_b32 v%d, 1, v%d' % (AA, LANE))
            a('v_lshlrev_b32 v%d, 4, v%d' % (AA, AA))
            a('v_mov_b32 v%d, 0xffff' % (AA+1))
            a('v_lshlrev_b32 v%d, v%d, v%d' % (AA, AA, AA+1))
            a('v_bfe_u32 v%d, v%d, 1, 2' % (AA+1, LANE))
            for r in range(4):
                a('v_cmp_eq_u32 vcc, %d, v%d' % (r, AA+1))
                a('v_cndmask_b32 v%d, 0, v%d, vcc' % (T[r], AA))
            for r in range(8): a('v_mov_b32 v%d, 0' % (ACC0+r))

        def expwork(p):
            r0, r1 = score[2*p], score[2*p+1]
            a('v_fma_f32 v%d, v%d, s48, -v%d' % (r0, r0, VM))
            a('v_fma_f32 v%d, v%d, s48, -v%d' % (r1, r1, VM))
            a('v_exp_f32 v%d, v%d' % (r0, r0)); a('v_exp_f32 v%d, v%d' % (r1, r1))
            a('v_add_f32 v%d, v%d, v%d' % (VL, VL, r0)); a('v_cvt_pk_bf16_f32 v%d, v%d, v%d' % (r0, r0, r0))
            a('v_add_f32 v%d, v%d, v%d' % (VL, VL, r1)); a('v_cvt_pk_bf16_f32 v%d, v%d, v%d' % (r1, r1, r1))

        def mlwork():
            s = free.pop(0)
            self.xrows(VL, s, 'v_add_f32')
            a('v_min_u32 v%d, 0xfffffffe, v%d' % (s, VM)); a('v_min_u32 v%d, 0xfffffffe, v%d' % (s+1, VL))
            a('v_lshlrev_b32 v%d, 7, v%d' % (s+2, LANE))
            a('s_lshl_b32 s49, s4, 11'); a('s_lshl_b32 s50, s5, 5'); a('s_add_u32 s49, s49, s50')
            a('s_lshl_b32 s50, s3, 3'); a('s_add_u32 s49, s49, s50'); a('s_add_u32 s49, s49, 0x%x' % WS_ML)
            a('s_mov_b64 exec, 0x101')
            a('buffer_store_dwordx2 v[%d:%d], v%d, s[8:11], s49 offen sc1' % (s, s+1, s+2))
            a('s_mov_b64 exec, -1')
            vmops.append(('ml',))
            self.stamp(3)

        def vprep(g):
            A = AA if g % 2 == 0 else AB
            for r in range(4): a('v_and_b32 v%d, v%d, v%d' % (A+r, T[r], score[g-64]))

        def vwork(g, prepped=False):
            A = AA if g % 2 == 0 else AB
            if not prepped: vprep(g)
            s = gslot[g]
            a('v_mfma_f32_16x16x32_bf16 v[%d:%d], v[%d:%d], v[%d:%d], v[%d:%d]' % (ACC0, ACC0+3, A, A+3, s, s+3, ACC0, ACC0+3))
            a('v_mfma_f32_16x16x32_bf16 v[%d:%d], v[%d:%d], v[%d:%d], v[%d:%d]' % (ACC1, ACC1+3, A, A+3, s+4, s+7, ACC1, ACC1+3))
            free.append(s)

        g = 0
        while g < D//2: issue(g); g += 1
        a('s_barrier')
        while free:
            wait_for(D-2); issue(g); g += 1
        self.stamp(1)
        a('s_barrier')
        self.stamp(2)
        a('v_and_b32 v4, 15, v3'); a('v_lshlrev_b32 v5, 4, v4')
        a('v_lshrrev_b32 v4, 3, v4'); a('v_lshlrev_b32 v4, 9, v4')
        a('v_add_u32 v5, v5, v4'); a('v_xor_b32 v6, 0x200, v5')
        a('ds_read_b128 v[%d:%d], v5 offset:%d' % (QX, QX+3, L_QV))
        a('ds_read_b128 v[%d:%d], v5 offset:%d' % (QX+4, QX+7, L_QV+256))
        a('ds_read_b128 v[%d:%d], v6 offset:%d' % (QY, QY+3, L_QV))
        a('ds_read_b128 v[%d:%d], v6 offset:%d' % (QY+4, QY+7, L_QV+256))
        a('s_waitcnt lgkmcnt(0)')
        kp = 0; ep = 0; vg = 64; st = {'max': False, 'ml': False}

        def do_work():
            nonlocal kp, ep, vg
            n = 0
            while kp < 32 and n < self.catchup and is_landed(2*kp+1):
                kwork(kp); kp += 1; n += 1
            if kp == 32 and not st['max']:
                maxwork(); st['max'] = True
            if st['max']:
                n = 0
                while ep < 32 and n < self.expper:
                    expwork(ep); ep += 1; n += 1
                if ep == 32 and not st['ml']:
                    mlwork(); st['ml'] = True
                n = 0
                while vg < 128 and n < 3 and is_landed(vg) and (vg-64)//2 < ep:
                    vwork(vg); vg += 1; n += 1

        while g < 128:
            if not free:
                do_work()
                assert free
                wait_for(D-2); issue(g); g += 1
            else:
                wait_for(D-2); issue(g); g += 1
                do_work()
        assert st['ml'] and kp == 32
        s = free.pop(0)
        a('v_and_b32 v%d, 15, v3' % s); a('v_lshlrev_b32 v%d, 5, v%d' % (s, s))
        a('v_bfe_u32 v%d, v3, 4, 1' % (s+1)); a('v_lshl_add_u32 v%d, v%d, 4, v%d' % (s, s+1, s))
        a('v_lshrrev_b32 v%d, 5, v3' % (s+1)); a('v_lshl_add_u32 v%d, v%d, 10, v%d' % (s, s+1, s))
        a('s_lshl_b32 s49, s3, 11'); a('v_add_u32 v%d, s49, v%d' % (s, s))
        while vg < 128:
            vprep(vg)
            if not is_landed(vg):
                wait_for(len(vmops) - (vmops.index(('g', vg, 1)) + 1))
            vwork(vg, True); vg += 1
        self.stamp(4)
        a('ds_write_b128 v%d, v[%d:%d] offset:%d' % (s, ACC0, ACC0+3, L_ACC))
        a('ds_write_b128 v%d, v[%d:%d] offset:%d' % (s, ACC1, ACC1+3, L_ACC+512))
        a('s_waitcnt lgkmcnt(0)')
        a('s_barrier')
        self.stamp(5)
        a('s_branch L_exit')

    def hbarrier(self):
        a = self.a; l = self.lab('hb')
        a('s_mov_b64 exec, 1')
        a('v_mov_b32 v4, 0'); a('v_mov_b32 v5, 1')
        a('ds_add_u32 v4, v5 offset:%d' % L_CNT)
        a(l + ':')
        a('ds_read_b32 v5, v4 offset:%d' % L_CNT)
        a('s_waitcnt lgkmcnt(0)')
        a('v_cmp_le_u32 vcc, 4, v5')
        a('s_cbranch_vccnz %s_ok' % l)
        self.guard(l)
        a(l + '_ok:')
        a('s_mov_b64 exec, -1')

    def dma64(self, nins, rs_sgpr, paced):
        a = self.a
        a('v_lshrrev_b32 v4, 3, v3')
        a('v_mul_lo_u32 v5, v4, s%d' % rs_sgpr)
        a('v_and_b32 v6, 7, v3')
        a('v_and_b32 v4, 2, v4')
        a('v_xor_b32 v6, v6, v4')
        a('v_lshl_add_u32 v8, v6, 4, v5')
        a('v_xor_b32 v6, 4, v6')
        a('v_lshl_add_u32 v9, v6, 4, v5')
        a('s_lshl_b32 s53, s%d, 3' % rs_sgpr)
        a('s_mul_i32 s54, s12, %d' % nins)
        a('s_mul_i32 s55, s54, s53'); a('s_add_u32 s52, s52, s55')
        a('s_lshl_b32 s54, s54, 10'); a('s_add_u32 s54, s54, %d' % L_WBUF)
        for i in range(nins):
            a('s_add_u32 m0, s54, %d' % (i*1024))
            if paced and i: a('s_waitcnt vmcnt(0)')
            a('buffer_load_dwordx4 v%d, s[40:43], s52 offen %s lds' % (8 + i % 2, self.ntw))
            if i+1 < nins: a('s_add_u32 s52, s52, s53')

    def trread64(self, nk, B):
        a = self.a
        a('v_lshrrev_b32 v4, 4, v3')
        a('v_bfe_u32 v5, v3, 2, 2')
        a('v_lshl_add_u32 v6, v4, 3, v5'); a('v_lshlrev_b32 v6, 7, v6')
        a('v_and_b32 v4, 1, v4'); a('v_lshlrev_b32 v4, 2, v4')
        a('v_and_b32 v5, 2, v5'); a('v_or_b32 v4, v4, v5')
        a('v_bfe_u32 v5, v3, 1, 1'); a('s_lshl_b32 s53, s12, 1'); a('v_add_u32 v5, s53, v5')
        a('v_xor_b32 v4, v4, v5'); a('v_lshl_add_u32 v6, v4, 4, v6')
        a('v_and_b32 v5, 1, v3'); a('v_lshl_add_u32 v6, v5, 3, v6')
        a('v_add_u32 v6, %d, v6' % L_WBUF)
        for i in range(nk):
            for b in range(2):
                r = B + 4*i + 2*b
                a('ds_read_b64_tr_b16 v[%d:%d], v6 offset:%d' % (r, r+1, i*4096 + b*512))

    def mfma_chain(self, nk, vaddr, off0, step, A, B, Dr):
        a = self.a
        for i in range(nk):
            a('ds_read_b128 v[%d:%d], v%d offset:%d' % (A+4*i, A+4*i+3, vaddr, off0 + i*step))
        for i in range(nk):
            a('s_waitcnt lgkmcnt(%d)' % min(nk-1-i, 15))
            c = '0' if i == 0 else 'v[%d:%d]' % (Dr, Dr+3)
            a('v_mfma_f32_16x16x32_bf16 v[%d:%d], v[%d:%d], v[%d:%d], %s' % (Dr, Dr+3, A+4*i, A+4*i+3, B+4*i, B+4*i+3, c))

    def poll_tagged(self, loads, nreg, R, sleep=0):
        a = self.a; l = self.lab('pt')
        a(l + ':')
        for x in loads: a(x)
        a('s_waitcnt vmcnt(0)')
        for i in range(nreg): a('v_xor_b32 v%d, s%d, v%d' % (R+i, 14 + i % 2, R+i))
        a('v_or_b32 v4, v%d, v%d' % (R, R+1))
        for i in range(2, nreg, 2): a('v_or3_b32 v4, v4, v%d, v%d' % (R+i, R+i+1))
        a('v_and_b32 v4, 0xffff, v4')
        a('v_cmp_ne_u32 vcc, 0, v4')
        a('s_cbranch_vccz %s_ok' % l)
        if sleep: a('s_sleep %d' % sleep)
        self.guard(l)
        a(l + '_ok:')

    def poll_sent(self, loads, nreg, R, sleep=0):
        a = self.a; l = self.lab('ps')
        a(l + ':')
        for x in loads: a(x)
        n = len(loads); per = nreg // n
        for k in range(n):
            a('s_waitcnt vmcnt(%d)' % (n-1-k))
            for i in range(k*per, (k+1)*per, 2):
                if i == 0: a('v_max_u32 v4, v%d, v%d' % (R, R+1))
                else: a('v_max3_u32 v4, v4, v%d, v%d' % (R+i, R+i+1))
        a('v_cmp_eq_u32 vcc, -1, v4')
        a('s_cbranch_vccz %s_ok' % l)
        if sleep: a('s_sleep %d' % sleep)
        self.guard(l)
        a(l + '_ok:')

    def hpath(self):
        a = self.a
        B = 64; A = 160; Dr = 16
        a('L_H:')
        a('s_sub_u32 s12, s3, 4')
        a('v_mov_b32 v4, 0')
        a('ds_write_b32 v4, v4 offset:%d' % L_CNT)
        a('v_mov_b32 v230, 0')
        a('v_min_u32 v2, 55, v3')
        a('v_cmp_gt_u32 s[62:63], 56, v3')
        a('s_waitcnt lgkmcnt(0)')
        a('s_barrier')
        a('buffer_load_dword v1, v4, s[8:11], 0 offen sc1')
        a('s_cmp_ge_u32 s5, 24'); a('s_cbranch_scc1 L_P2')
        a('s_lshl_b32 s13, s5, 3'); a('s_add_u32 s13, s13, s4')
        a('s_cmp_lt_u32 s13, 42'); a('s_cbranch_scc1 L_P1')
        a('s_waitcnt vmcnt(0)')
        self.tags()
        a('s_branch L_Q')

        a('L_P1:')
        self.srd(44, 34, 896)
        a('v_lshlrev_b32 v5, 4, v2')
        a('buffer_load_dwordx4 v[20:23], v5, s[44:47], 0 offen')
        self.srd(40, 36, 448*5376)
        a('s_mov_b32 s51, 5376'); a('s_lshl_b32 s52, s13, 7')
        self.dma64(14, 51, False)
        l = self.lab('nc')
        a('s_cmp_lt_u32 s13, 14'); a('s_cbranch_scc0 %s' % l)
        for r in range(4): a('v_mov_b32 v%d, -1' % (12+r))
        a('v_lshlrev_b32 v5, 4, v3')
        a('s_mul_i32 s53, s13, 12288'); a('s_mul_i32 s54, s12, 3072'); a('s_add_u32 s53, s53, s54'); a('s_add_u32 s53, s53, 0x%x' % WS_ATT)
        for i in range(3): a('buffer_store_dwordx4 v[12:15], v5, s[8:11], s53 offen offset:%d sc1' % (i*1024))
        a(l + ':')
        a('s_waitcnt vmcnt(14)')
        self.tags()
        self.unpack8(24, 20)
        a('s_mov_b32 s53, %s' % fhex(-LOG2E))
        for i in range(8): a('v_mul_f32 v%d, s53, v%d' % (32+i, 24+i))
        for i in range(8): a('v_exp_f32 v%d, v%d' % (32+i, 32+i))
        for i in range(8): a('v_add_f32 v%d, 1.0, v%d' % (32+i, 32+i))
        for i in range(8): a('v_rcp_f32 v%d, v%d' % (32+i, 32+i))
        for i in range(8): a('v_mul_f32 v%d, v%d, v%d' % (32+i, 32+i, 24+i))
        for i in range(4): a('v_cvt_pk_bf16_f32 v%d, v%d, v%d' % (20+i, 32+2*i, 33+2*i))
        a('s_lshl_b32 s53, s12, 10'); a('v_lshl_add_u32 v10, v3, 4, s53')
        a('ds_write_b128 v10, v[20:23] offset:%d' % L_AV)
        a('s_lshl_b32 s56, s13, 8'); a('s_add_u32 s56, s56, 0x%x' % WS_MOD)
        a('s_waitcnt vmcnt(0)')
        self.stamp(1)
        self.hbarrier()
        self.trread64(14, B)
        a('s_branch L_PG')

        a('L_P2:')
        self.srd(44, 16, 896)
        a('v_lshlrev_b32 v5, 4, v2')
        a('buffer_load_dwordx4 v[20:23], v5, s[44:47], 0 offen')
        self.srd(40, 22, 448*8192)
        a('s_sub_u32 s13, s5, 24'); a('s_lshl_b32 s53, s4, 3'); a('s_add_u32 s13, s13, s53')
        a('s_mov_b32 s51, 8192'); a('s_lshl_b32 s52, s13, 7')
        self.dma64(14, 51, False)
        for r in range(4): a('v_mov_b32 v%d, -1' % (12+r))
        a('v_lshlrev_b32 v5, 4, v3')
        a('s_lshl_b32 s53, s13, 13'); a('s_lshl_b32 s54, s12, 11'); a('s_add_u32 s53, s53, s54'); a('s_add_u32 s53, s53, 0x%x' % WS_PART)
        for i in range(2): a('buffer_store_dwordx4 v[12:15], v5, s[8:11], s53 offen offset:%d sc1' % (i*1024))
        a('s_lshl_b32 s53, s13, 8'); a('s_lshl_b32 s54, s12, 6'); a('s_add_u32 s53, s53, s54'); a('s_add_u32 s53, s53, 0x%x' % WS_ML)
        a('s_mov_b64 exec, 15')
        a('buffer_store_dwordx4 v[12:15], v5, s[8:11], s53 offen sc1')
        a('s_mov_b64 exec, -1')
        a('s_waitcnt vmcnt(14)')
        self.tags()
        self.unpack8(24, 20)
        a('v_add_f32 v32, v24, v25')
        for i in range(2, 8): a('v_add_f32 v32, v32, v%d' % (24+i))
        a('v_cndmask_b32 v32, 0, v32, s[62:63]')
        self.allreduce(32, 33)
        a('v_mul_f32 v32, %s, v32' % fhex(1.0/448))
        for i in range(8): a('v_sub_f32 v%d, v%d, v32' % (40+i, 24+i))
        a('v_mul_f32 v34, v40, v40')
        for i in range(1, 8): a('v_fmac_f32 v34, v%d, v%d' % (40+i, 40+i))
        a('v_cndmask_b32 v34, 0, v34, s[62:63]')
        self.allreduce(34, 33)
        a('v_mul_f32 v34, %s, v34' % fhex(1.0/448))
        a('v_cvt_pk_bf16_f32 v34, 0, v34')
        a('v_add_f32 v34, %s, v34' % fhex(1e-5))
        a('v_cvt_pk_bf16_f32 v34, 0, v34')
        a('v_sqrt_f32 v34, v34')
        a('v_cvt_pk_bf16_f32 v32, 0, v32')
        a('v_cvt_pk_bf16_f32 v34, 0, v34')
        a('v_rcp_f32 v34, v34')
        for i in range(8): a('v_sub_f32 v%d, v%d, v32' % (24+i, 24+i))
        for i in range(8): a('v_cvt_pk_bf16_f32 v%d, 0, v%d' % (24+i, 24+i))
        for i in range(8): a('v_mul_f32 v%d, v34, v%d' % (24+i, 24+i))
        for i in range(8): a('v_cvt_pk_bf16_f32 v%d, 0, v%d' % (24+i, 24+i))
        a('s_lshl_b32 s56, s13, 8'); a('s_add_u32 s56, s56, 0x%x' % WS_Q)
        a('s_waitcnt vmcnt(0)')
        self.stamp(1)
        self.hbarrier()
        self.trread64(14, B)
        a('v_lshlrev_b32 v5, 5, v2')
        a('s_mov_b32 s53, 0x%x' % WS_MOD)
        self.poll_tagged(['buffer_load_dwordx4 v[32:35], v5, s[8:11], s53 offen sc1',
                          'buffer_load_dwordx4 v[36:39], v5, s[8:11], s53 offen offset:16 sc1',
                          'buffer_load_dwordx4 v[40:43], v5, s[8:11], s53 offen offset:1792 sc1',
                          'buffer_load_dwordx4 v[44:47], v5, s[8:11], s53 offen offset:1808 sc1'], 16, 32)
        self.stamp(2)
        for i in range(8): a('v_add_f32 v%d, 1.0, v%d' % (40+i, 40+i))
        for i in range(8): a('v_cvt_pk_bf16_f32 v%d, 0, v%d' % (40+i, 40+i))
        for i in range(8): a('v_mul_f32 v%d, v%d, v%d' % (40+i, 40+i, 24+i))
        for i in range(8): a('v_cvt_pk_bf16_f32 v%d, 0, v%d' % (40+i, 40+i))
        for i in range(8): a('v_add_f32 v%d, v%d, v%d' % (40+i, 40+i, 32+i))
        for i in range(4): a('v_cvt_pk_bf16_f32 v%d, v%d, v%d' % (20+i, 40+2*i, 41+2*i))
        a('s_lshl_b32 s53, s12, 10'); a('v_lshl_add_u32 v10, v3, 4, s53')
        a('ds_write_b128 v10, v[20:23] offset:%d' % L_AV)

        a('L_PG:')
        a('v_lshrrev_b32 v10, 4, v3'); a('s_lshl_b32 s53, s12, 10'); a('v_lshl_add_u32 v10, v10, 4, s53')
        a('v_and_b32 v11, 1, v3'); a('v_lshlrev_b32 v11, 15, v11'); a('v_xor_b32 v11, s14, v11')
        a('v_lshlrev_b32 v5, 2, v3'); a('s_lshl_b32 s53, s12, 6'); a('s_add_u32 s56, s56, s53')
        a('s_waitcnt lgkmcnt(0)')
        self.mfma_chain(14, 10, L_AV, 64, A, B, Dr)
        a('v_cvt_pk_bf16_f32 v%d, 0, v%d' % (Dr, Dr))
        a('v_or_b32 v%d, v%d, v11' % (Dr, Dr))
        a('s_mov_b64 exec, 0xffff')
        a('buffer_store_dword v%d, v5, s[8:11], s56 offen sc1' % Dr)
        a('s_mov_b64 exec, -1')
        self.stamp(3)

        a('L_Q:')
        a('s_cmp_eq_u32 s12, 0'); a('s_cbranch_scc0 L_B1')
        a('v_lshlrev_b32 v5, 5, v3')
        a('s_lshl_b32 s53, s4, 11'); a('s_add_u32 s53, s53, 0x%x' % WS_Q)
        self.poll_tagged(['buffer_load_dwordx4 v[32:35], v5, s[8:11], s53 offen sc1',
                          'buffer_load_dwordx4 v[36:39], v5, s[8:11], s53 offen offset:16 sc1'], 8, 32, sleep=2)
        a('s_mov_b32 s53, 0x07060302')
        for i in range(4): a('v_perm_b32 v%d, v%d, v%d, s53' % (20+i, 33+2*i, 32+2*i))
        a('v_lshlrev_b32 v5, 4, v3')
        a('ds_write_b128 v5, v[20:23] offset:%d' % L_QV)
        a('L_B1:')
        a('s_waitcnt lgkmcnt(0)')
        self.stamp(4)
        a('s_barrier')

        a('s_cmp_lt_u32 s5, 14'); a('s_cbranch_scc1 L_S1')
        a('s_cmp_lt_u32 s5, 21'); a('s_cbranch_scc1 L_S2')
        a('s_branch L_S3')
        a('L_S1:')
        self.srd(40, 24, 4096*896)
        a('s_and_b32 s53, s5, 1'); a('s_lshl_b32 s13, s4, 1'); a('s_add_u32 s13, s13, s53')
        a('s_mul_i32 s52, s13, %d' % (256*896))
        a('s_lshr_b32 s53, s5, 1'); a('s_lshl_b32 s53, s53, 7'); a('s_add_u32 s52, s52, s53')
        a('s_mov_b32 s51, 896')
        self.dma64(8, 51, True)
        a('s_branch L_ML')

        a('L_S2:')
        a('s_mul_i32 s13, s4, 7'); a('s_add_u32 s13, s13, s5'); a('s_sub_u32 s13, s13, 14')
        self.srd(40, 28, 448*3584); self.srd(44, 30, 448*3584); self.srd(48, 32, 1792*896)
        a('v_lshrrev_b32 v4, 2, v3'); a('v_mul_u32_u24 v4, 3584, v4'); a('v_and_b32 v5, 3, v3'); a('v_lshl_add_u32 v8, v5, 4, v4')
        a('v_lshlrev_b32 v9, 4, v3')
        a('s_lshl_b32 s52, s13, 6'); a('s_mul_i32 s53, s12, %d' % (112*3584)); a('s_add_u32 s52, s52, s53')
        a('s_mul_i32 s54, s12, 7168')
        a('s_mul_i32 s55, s13, 28672'); a('s_add_u32 s55, s55, s54')
        for i in range(7):
            a('s_add_u32 m0, s54, %d' % (L_WBUF + i*1024))
            a('s_waitcnt vmcnt(0)')
            a('buffer_load_dwordx4 v8, s[40:43], s52 offen %s lds' % self.ntw)
            a('s_add_u32 m0, s54, %d' % (L_UP + i*1024))
            a('s_waitcnt vmcnt(0)')
            a('buffer_load_dwordx4 v8, s[44:47], s52 offen %s lds' % self.ntw)
            a('s_add_u32 m0, s54, %d' % (L_DNW + i*1024))
            a('s_add_u32 s52, s52, %d' % (16*3584))
            a('buffer_load_dwordx4 v9, s[48:51], s55 offen %s lds' % self.ntw)
            a('s_add_u32 s55, s55, 1024')
        self.srd(44, 16, 896)
        a('v_lshlrev_b32 v5, 4, v2')
        a('buffer_load_dwordx4 v[20:23], v5, s[44:47], 0 offen')
        a('v_lshlrev_b32 v5, 5, v2')
        a('s_mov_b32 s53, 0x%x' % (WS_MOD + 896*4))
        self.poll_tagged(['buffer_load_dwordx4 v[%d:%d], v5, s[8:11], s53 offen offset:%d sc1' % (224+4*k, 227+4*k, (k//2)*1792 + (k % 2)*16) for k in range(6)], 24, 224, sleep=8)
        self.unpack8(248, 20)
        for i in range(8): a('v_add_f32 v%d, 1.0, v%d' % (240+i, 240+i))
        a('s_branch L_ML')

        a('L_S3:')
        a('s_sub_u32 s13, s5, 21'); a('s_lshl_b32 s13, s13, 3'); a('s_add_u32 s13, s13, s4')
        a('s_cmp_lt_u32 s13, 28'); a('s_cbranch_scc0 L_ML')
        a('s_cmp_eq_u32 s12, 2'); a('s_cbranch_scc0 L_ML')
        a('v_bfe_u32 v4, v3, 4, 1'); a('v_lshrrev_b32 v5, 5, v3'); a('v_lshl_add_u32 v4, v4, 1, v5')
        a('v_and_b32 v5, 3, v3'); a('v_lshl_add_u32 v4, v5, 2, v4')
        a('s_lshl_b32 s53, s13, 4'); a('v_add_u32 v4, s53, v4')
        a('v_lshlrev_b32 v230, 1, v4')
        a('v_lshlrev_b32 v5, 2, v4')
        a('v_and_b32 v6, 1, v4'); a('v_lshlrev_b32 v6, 15, v6'); a('v_xor_b32 v6, s14, v6')
        self.srd(44, 16, 896)
        a('buffer_load_ushort v226, v230, s[44:47], 0 offen')
        a('s_mov_b32 s53, 0x%x' % (WS_MOD + 896*4)); a('s_mov_b32 s54, 0x%x' % (WS_MOD + 2240*4))
        l = self.lab('e3m')
        a(l + ':')
        a('buffer_load_dword v224, v5, s[8:11], s53 offen sc1')
        a('buffer_load_dword v225, v5, s[8:11], s54 offen sc1')
        a('s_waitcnt vmcnt(0)')
        a('v_xor_b32 v224, v224, v6'); a('v_xor_b32 v225, v225, v6')
        a('v_or_b32 v4, v224, v225'); a('v_and_b32 v4, 0xffff, v4')
        a('v_cmp_ne_u32 vcc, 0, v4')
        a('s_cbranch_vccz %s_ok' % l)
        a('s_sleep 8')
        self.guard(l)
        a(l + '_ok:')
        a('v_lshlrev_b32 v226, 16, v226')

        a('L_ML:')
        self.stamp(5)
        a('s_cmp_lt_u32 s12, 2'); a('s_cbranch_scc0 L_B2')
        a('v_lshlrev_b32 v5, 4, v3')
        a('s_lshl_b32 s57, s4, 1'); a('s_add_u32 s57, s57, s12')
        a('s_lshl_b32 s53, s57, 10'); a('s_add_u32 s53, s53, 0x%x' % WS_ML)
        self.poll_sent(['buffer_load_dwordx4 v[32:35], v5, s[8:11], s53 offen sc1'], 4, 32, sleep=32)
        a('v_max_f32 v36, v32, v34')
        self.allreduce(36, 37, 'v_max_f32')
        a('v_sub_f32 v32, v32, v36'); a('v_sub_f32 v34, v34, v36')
        a('v_exp_f32 v32, v32'); a('v_exp_f32 v34, v34')
        a('v_mul_f32 v36, v32, v33'); a('v_fmac_f32 v36, v34, v35')
        self.allreduce(36, 37)
        a('v_rcp_f32 v36, v36')
        a('s_lshl_b32 s53, s5, 1'); a('s_add_u32 s54, s53, 1')
        a('v_mul_f32 v32, v32, v36'); a('v_mul_f32 v34, v34, v36')
        a('v_readlane_b32 s64, v32, s53'); a('v_readlane_b32 s65, v34, s53')
        a('v_readlane_b32 s66, v32, s54'); a('v_readlane_b32 s67, v34, s54')
        a('s_lshl_b32 s53, s12, 10'); a('v_add_u32 v10, s53, v5')
        a('s_lshl_b32 s58, s57, 5'); a('s_add_u32 s58, s58, s5'); a('s_lshl_b32 s58, s58, 10'); a('s_add_u32 s58, s58, 0x%x' % WS_PART)
        self.stamp(6)
        a('s_waitcnt vmcnt(0)')
        a('s_barrier')
        self.stamp(7)
        for w in range(4): a('ds_read_b128 v[%d:%d], v10 offset:%d' % (32+4*w, 35+4*w, L_ACC + w*2048))
        for w in range(4):
            a('s_waitcnt lgkmcnt(%d)' % (3-w))
            for r in range(4):
                if w == 0: a('v_mul_f32 v%d, s64, v%d' % (20+r, 32+r))
                else: a('v_fmac_f32 v%d, s%d, v%d' % (20+r, 64+w, 32+4*w+r))
        for r in range(4): a('v_min_u32 v%d, 0xfffffffe, v%d' % (20+r, 20+r))
        a('buffer_store_dwordx4 v[20:23], v5, s[8:11], s58 offen sc1')
        self.stamp(8)
        a('s_branch L_E')
        a('L_B2:')
        a('s_waitcnt vmcnt(0)')
        a('s_barrier')
        a('L_E:')
        a('s_cmp_lt_u32 s5, 14'); a('s_cbranch_scc1 L_E1')
        a('s_cmp_lt_u32 s5, 21'); a('s_cbranch_scc1 L_E2')
        a('s_cmp_lt_u32 s13, 28'); a('s_cbranch_scc0 L_exit')
        a('s_cmp_eq_u32 s12, 2'); a('s_cbranch_scc0 L_exit')

        a('v_lshrrev_b32 v4, 2, v3'); a('v_mul_u32_u24 v4, 1792, v4'); a('v_and_b32 v5, 3, v3'); a('v_lshl_add_u32 v5, v5, 4, v4')
        a('s_lshl_b32 s53, s13, 6'); a('s_add_u32 s54, s53, 0x%x' % WS_ATT)
        self.poll_sent(['buffer_load_dwordx4 v[32:35], v5, s[8:11], s54 offen sc1'], 4, 32)
        self.stamp(9)
        l = self.lab('ep')
        a('s_cmp_eq_u32 s13, 0'); a('s_cbranch_scc0 %s' % l)
        a('v_mov_b32 v6, 0'); a('v_mov_b32 v7, s61')
        a('s_mov_b64 exec, 1')
        a('buffer_store_dword v7, v6, s[8:11], 0 offen sc1')
        a('s_mov_b64 exec, -1')
        a(l + ':')
        self.red16(32)
        a('v_fmac_f32 v226, v224, v32')
        self.srd(40, 8, WS_DN_END)
        self.srd(44, 38, 896)
        for i in range(4): a('s_add_u32 s%d, s53, 0x%x' % (54+i, WS_DN + i*16*1792))
        a('v_add_u32 v6, s57, v5')
        self.poll_sent(['buffer_load_dwordx4 v[%d:%d], v5, s[40:43], s%d offen sc1' % (32+4*i, 35+4*i, 54+i) for i in range(3)] +
                       ['buffer_load_dwordx4 v[44:47], v6, s[40:43], 0 offen sc1'], 16, 32)
        self.stamp(10)
        a('v_pk_add_f32 v[32:33], v[32:33], v[36:37]'); a('v_pk_add_f32 v[34:35], v[34:35], v[38:39]')
        a('v_pk_add_f32 v[40:41], v[40:41], v[44:45]'); a('v_pk_add_f32 v[42:43], v[42:43], v[46:47]')
        a('v_pk_add_f32 v[32:33], v[32:33], v[40:41]'); a('v_pk_add_f32 v[34:35], v[34:35], v[42:43]')
        self.red16(32)
        a('v_fmac_f32 v226, v225, v32')
        a('v_cvt_pk_bf16_f32 v226, v226, v226')
        a('s_mov_b32 exec_lo, 0x000f000f'); a('s_mov_b32 exec_hi, 0x000f000f')
        a('buffer_store_short v226, v230, s[44:47], 0 offen')
        a('s_mov_b64 exec, -1')
        self.stamp(11)
        a('s_branch L_exit')

        a('L_E1:')
        self.trread64(8, B)
        a('v_lshlrev_b32 v5, 4, v3')
        a('s_lshl_b32 s53, s13, 15'); a('s_lshl_b32 s54, s12, 13'); a('s_add_u32 s53, s53, s54'); a('s_add_u32 s53, s53, 0x%x' % WS_PART)
        a('s_add_u32 s54, s53, 4096')
        a('s_mul_i32 s55, s12, 576'); a('v_lshl_add_u32 v10, v3, 3, s55')
        a('v_and_b32 v11, 3, v3'); a('v_mul_u32_u24 v11, 576, v11'); a('v_lshrrev_b32 v12, 4, v3'); a('v_lshl_add_u32 v11, v12, 4, v11')
        a('s_mul_i32 s56, s13, 1792'); a('s_lshr_b32 s55, s5, 1'); a('s_lshl_b32 s55, s55, 8'); a('s_add_u32 s56, s56, s55')
        a('s_lshl_b32 s55, s12, 6'); a('s_add_u32 s56, s56, s55'); a('s_add_u32 s56, s56, 0x%x' % WS_ATT)
        a('v_lshlrev_b32 v12, 2, v3')
        R = 100
        self.poll_sent(['buffer_load_dwordx4 v[%d:%d], v5, s[8:11], s%d offen offset:%d sc1' % (R+4*i, R+3+4*i, 53 + i//4, (i % 4)*1024) for i in range(8)], 32, R)
        self.stamp(9)
        for st in (16, 8, 4):
            for i in range(0, st, 2):
                a('v_pk_add_f32 v[%d:%d], v[%d:%d], v[%d:%d]' % (R+i, R+i+1, R+i, R+i+1, R+st+i, R+st+i+1))
        a('v_cvt_pk_bf16_f32 v20, v%d, v%d' % (R, R+1)); a('v_cvt_pk_bf16_f32 v21, v%d, v%d' % (R+2, R+3))
        a('ds_write_b64 v10, v[20:21] offset:%d' % L_RED)
        a('s_waitcnt lgkmcnt(0)')
        a('s_barrier')
        self.stamp(10)
        self.mfma_chain(8, 11, L_RED, 64, A, B, Dr)
        a('v_add_f32 v%d, v%d, v%d' % (Dr, Dr, Dr+1)); a('v_add_f32 v%d, v%d, v%d' % (Dr+2, Dr+2, Dr+3))
        a('v_add_f32 v%d, v%d, v%d' % (Dr, Dr, Dr+2))
        a('v_min_u32 v%d, 0xfffffffe, v%d' % (Dr, Dr))
        a('s_mov_b64 exec, 0xffff')
        a('buffer_store_dword v%d, v12, s[8:11], s56 offen sc1' % Dr)
        a('s_mov_b64 exec, -1')
        self.stamp(11)
        a('s_branch L_exit')

        a('L_E2:')
        B2 = 120
        a('v_lshrrev_b32 v4, 4, v3'); a('v_bfe_u32 v5, v3, 2, 2'); a('v_lshl_add_u32 v4, v4, 3, v5')
        a('v_lshlrev_b32 v6, 6, v4'); a('v_and_b32 v5, 1, v3'); a('v_lshl_add_u32 v6, v5, 3, v6')
        a('v_bfe_u32 v5, v3, 1, 1'); a('v_mul_u32_u24 v5, %d, v5' % (L_UP - L_WBUF)); a('v_add_u32 v6, v6, v5')
        a('s_lshl_b32 s53, s12, 4'); a('s_add_u32 s53, s53, %d' % L_WBUF); a('v_add_u32 v6, s53, v6')
        for i in range(14):
            for b in range(2):
                r = B + 4*i + 2*b
                a('ds_read_b64_tr_b16 v[%d:%d], v6 offset:%d' % (r, r+1, i*2048 + b*256))
        a('v_mul_u32_u24 v6, 896, v4'); a('v_and_b32 v5, 3, v3'); a('v_lshl_add_u32 v6, v5, 3, v6')
        a('s_mul_i32 s53, s12, 224'); a('s_add_u32 s53, s53, %d' % L_DNW); a('v_add_u32 v6, s53, v6')
        for t in range(7):
            for b in range(2):
                r = B2 + 4*t + 2*b
                a('ds_read_b64_tr_b16 v[%d:%d], v6 offset:%d' % (r, r+1, t*32 + b*4*896))
        a('v_lshlrev_b32 v5, 5, v2')
        a('s_mul_i32 s53, s12, %d' % (4*1792)); a('s_add_u32 s53, s53, 0x%x' % WS_ATT); a('s_add_u32 s54, s53, %d' % (2*1792))
        a('s_lshl_b32 s55, s12, 11'); a('v_lshl_add_u32 v10, v3, 4, s55')
        a('v_lshlrev_b32 v11, 4, v3')
        a('s_lshl_b32 s55, s12, 10'); a('v_lshl_add_u32 v12, v3, 4, s55')
        a('v_lshrrev_b32 v13, 4, v3'); a('v_lshlrev_b32 v14, 4, v13'); a('v_add_u32 v13, s55, v14')
        a('s_lshl_b32 s55, s12, 4'); a('v_lshl_add_u32 v15, v3, 1, s55')
        a('v_lshlrev_b32 v9, 2, v3')
        a('s_mul_i32 s56, s13, 1792'); a('s_mul_i32 s55, s12, 448'); a('s_add_u32 s56, s56, s55'); a('s_add_u32 s56, s56, 0x%x' % WS_DN)
        a('s_mov_b32 s64, 0xffff0000'); a('s_mov_b32 s65, 0')
        a('s_mov_b32 s66, 0'); a('s_mov_b32 s67, 0xffff')
        a('s_mov_b32 s68, 0'); a('s_mov_b32 s69, 0xffff0000')
        a('s_mov_b32 s59, %s' % fhex(-LOG2E))
        R = 24
        self.poll_sent(['buffer_load_dwordx4 v[%d:%d], v5, s[8:11], s%d offen offset:%d sc1' % (R+4*i, R+3+4*i, 53 + i//4, ((i//2) % 2)*1792 + (i % 2)*16) for i in range(8)], 32, R)
        self.stamp(9)
        for st in (16, 8):
            for i in range(0, st, 2):
                a('v_pk_add_f32 v[%d:%d], v[%d:%d], v[%d:%d]' % (R+i, R+i+1, R+i, R+i+1, R+st+i, R+st+i+1))
        a('ds_write_b128 v10, v[%d:%d] offset:%d' % (R, R+3, L_RED))
        a('ds_write_b128 v10, v[%d:%d] offset:%d' % (R+4, R+7, L_RED+1024))
        a('s_waitcnt lgkmcnt(0)')
        a('s_barrier')
        self.stamp(10)
        for w in range(4):
            for u in range(2):
                a('ds_read_b128 v[%d:%d], v11 offset:%d' % (R+8*w+4*u, R+8*w+4*u+3, L_RED + w*2048 + u*1024))
        a('s_waitcnt lgkmcnt(4)')
        for i in range(0, 8, 2): a('v_pk_add_f32 v[%d:%d], v[%d:%d], v[%d:%d]' % (R+i, R+i+1, R+i, R+i+1, R+8+i, R+9+i))
        a('s_waitcnt lgkmcnt(0)')
        for i in range(0, 8, 2): a('v_pk_add_f32 v[%d:%d], v[%d:%d], v[%d:%d]' % (R+16+i, R+17+i, R+16+i, R+17+i, R+24+i, R+25+i))
        for i in range(0, 8, 2): a('v_pk_add_f32 v[%d:%d], v[%d:%d], v[%d:%d]' % (R+i, R+i+1, R+i, R+i+1, R+16+i, R+17+i))
        for i in range(0, 8, 2): a('v_pk_fma_f32 v[%d:%d], v[%d:%d], v[%d:%d], v[%d:%d]' % (R+i, R+i+1, R+i, R+i+1, 224+i, 225+i, 248+i, 249+i))
        a('v_readfirstlane_b32 s53, v%d' % R)
        for i in range(8): a('v_subrev_f32 v%d, s53, v%d' % (R+i, R+i))
        a('v_pk_add_f32 v[40:41], v[%d:%d], v[%d:%d]' % (R, R+1, R+2, R+3))
        a('v_pk_mul_f32 v[42:43], v[%d:%d], v[%d:%d]' % (R, R+1, R, R+1))
        a('v_pk_add_f32 v[40:41], v[40:41], v[%d:%d]' % (R+4, R+5))
        a('v_pk_fma_f32 v[42:43], v[%d:%d], v[%d:%d], v[42:43]' % (R+2, R+3, R+2, R+3))
        a('v_pk_add_f32 v[40:41], v[40:41], v[%d:%d]' % (R+6, R+7))
        a('v_pk_fma_f32 v[42:43], v[%d:%d], v[%d:%d], v[42:43]' % (R+4, R+5, R+4, R+5))
        a('v_add_f32 v40, v40, v41')
        a('v_pk_fma_f32 v[42:43], v[%d:%d], v[%d:%d], v[42:43]' % (R+6, R+7, R+6, R+7))
        a('v_cndmask_b32 v40, 0, v40, s[62:63]')
        a('v_add_f32 v42, v42, v43')
        a('v_cndmask_b32 v42, 0, v42, s[62:63]')
        a('v_permlane32_swap_b32 v40, v42')
        a('v_add_f32 v40, v40, v42')
        a('v_mov_b32 v42, v40'); a('v_permlane16_swap_b32 v40, v42'); a('v_add_f32 v40, v40, v42')
        for r in (8, 4, 2, 1): a('v_add_f32_dpp v40, v40, v40 row_ror:%d %s' % (r, DPPM))
        a('v_mul_f32 v40, %s, v40' % fhex(1.0/448))
        a('v_mov_b32 v42, v40'); a('v_permlane32_swap_b32 v40, v42')
        a('v_fma_f32 v42, -v40, v40, v42')
        a('v_max_f32 v42, 0, v42')
        a('v_add_f32 v42, %s, v42' % fhex(1e-5))
        a('v_rsq_f32 v42, v42')
        for i in range(8): a('v_sub_f32 v%d, v%d, v40' % (R+i, R+i))
        a('v_mov_b32 v43, v42')
        for i in range(0, 8, 2): a('v_pk_mul_f32 v[%d:%d], v[%d:%d], v[42:43]' % (R+i, R+i+1, R+i, R+i+1))
        for i in range(0, 8, 2): a('v_pk_fma_f32 v[%d:%d], v[%d:%d], v[%d:%d], v[%d:%d]' % (R+i, R+i+1, R+i, R+i+1, 240+i, 241+i, 232+i, 233+i))
        for i in range(4): a('v_cvt_pk_bf16_f32 v%d, v%d, v%d' % (20+i, R+2*i, R+2*i+1))
        a('ds_write_b128 v12, v[20:23] offset:%d' % L_AV)
        self.stamp(11)
        self.mfma_chain(14, 13, L_AV, 64, A, B, Dr)
        a('v_mul_f32 v20, s59, v%d' % Dr)
        a('v_exp_f32 v20, v20')
        a('v_mul_f32_dpp v21, v%d, v%d row_ror:8 %s' % (Dr, Dr, DPPM))
        a('v_add_f32 v20, 1.0, v20')
        a('v_rcp_f32 v20, v20')
        a('s_mov_b64 exec, 0xff')
        a('v_mul_f32 v20, v20, v21')
        a('v_cvt_pk_bf16_f32 v20, v20, v20')
        a('ds_write_b16 v15, v20 offset:%d' % L_ACTV)
        a('s_mov_b64 exec, -1')
        a('s_waitcnt lgkmcnt(0)')
        a('s_barrier')
        self.stamp(12)
        a('ds_read_b128 v[20:23], v14 offset:%d' % L_ACTV)
        a('s_waitcnt lgkmcnt(0)')
        for t in range(7):
            a('v_mfma_f32_16x16x32_bf16 v[%d:%d], v[20:23], v[%d:%d], 0' % (A+4*t, A+4*t+3, B2+4*t, B2+4*t+3))
        a('v_cndmask_b32 v24, v%d, v%d, s[64:65]' % (A, A+4))
        a('v_cndmask_b32 v24, v24, v%d, s[66:67]' % (A+8))
        a('v_cndmask_b32 v24, v24, v%d, s[68:69]' % (A+12))
        a('v_min_u32 v24, 0xfffffffe, v24')
        a('buffer_store_dword v24, v9, s[8:11], s56 offen sc1')
        a('v_cndmask_b32 v25, v%d, v%d, s[64:65]' % (A+16, A+20))
        a('v_cndmask_b32 v25, v25, v%d, s[66:67]' % (A+24))
        a('v_min_u32 v25, 0xfffffffe, v25')
        a('s_mov_b32 exec_hi, 0xffff')
        a('buffer_store_dword v25, v9, s[8:11], s56 offen offset:256 sc1')
        a('s_mov_b64 exec, -1')
        self.stamp(13)

    def tags(self):
        a = self.a
        a('v_readfirstlane_b32 s61, v1')
        a('s_add_u32 s61, s61, 1')
        a('s_and_b32 s14, s61, 0xffff')
        a('s_xor_b32 s15, s14, 0x8000')

    def red16(self, R):
        a = self.a
        a('v_permlane32_swap_b32 v%d, v%d' % (R, R+1)); a('v_permlane32_swap_b32 v%d, v%d' % (R+2, R+3))
        a('v_add_f32 v%d, v%d, v%d' % (R, R, R+1)); a('v_add_f32 v%d, v%d, v%d' % (R+2, R+2, R+3))
        a('v_permlane16_swap_b32 v%d, v%d' % (R, R+2))
        a('v_add_f32 v%d, v%d, v%d' % (R, R, R+2))
        a('v_add_f32_dpp v%d, v%d, v%d row_ror:4 %s' % (R, R, R, DPPM))
        a('v_add_f32_dpp v%d, v%d, v%d row_ror:8 %s' % (R, R, R, DPPM))

    def exit(self):
        a = self.a
        a('L_exit:')
        if self.prof:
            self.stamp(15)
            a('s_mov_b64 exec, -1')
            a('s_waitcnt lgkmcnt(0)')
            a('s_getreg_b32 s98, hwreg(HW_REG_XCC_ID, 0, 4)')
            a('v_mov_b32 v4, 0')
            for i in range(16): a('v_writelane_b32 v4, s%d, %d' % (70+2*i, i))
            a('v_lshlrev_b32 v5, 2, v3')
            a('s_lshl_b32 s53, s2, 3'); a('s_add_u32 s53, s53, s3'); a('s_lshl_b32 s53, s53, 6'); a('s_add_u32 s53, s53, 0x%x' % WS_DBG)
            a('s_mov_b64 exec, 0xffff')
            a('buffer_store_dword v4, v5, s[8:11], s53 offen')
        a('L_end:')

    def build(self):
        self.entry(); self.spath(); self.hpath(); self.exit()
        hdr = open(REF).read()
        i = hdr.index('; Override launch'); j = hdr.index('.amdgcn_target')
        s = hdr[:i] + '; @launch grid=(256,1,1) block=(512,1,1) lds=%d\n' % L_TOTAL + hdr[j:]
        i = s.index('    ; v1 = byte offset'); j = s.index('s_endpgm')
        return s[:i] + self.a.text() + s[j:]


if __name__ == '__main__':
    kw = eval('dict(%s)' % (sys.argv[2] if len(sys.argv) > 2 else ''))
    open(sys.argv[1], 'w').write(Gen(**kw).build())
```

```python
import sys, os
sys.path.insert(0, os.path.dirname(os.path.abspath(__file__)))
from asmlib import Asm

REF = 'adaLN_cond__gqa_block_cached__swiglu_ffn__decode.s.ref'
KNAME = 'adaLN_cond__gqa_block_cached__swiglu_ffn__decode_kernel'

WS_EPOCH = 0x0
WS_MOD = 0x1000
WS_Q = 0x4000
WS_ML = 0x8000
WS_ATT = 0x10000
WS_DN = 0x17000
WS_DN_END = WS_DN + 56*1792
WS_PART = 0x40000
WS_DBG = 0x100000
WS_SIZE = 0x200000
L_CNT = 0
L_QV = 256
L_AV = 2048
L_ACC = 6144
L_RED = 14336
L_ACTV = 22528
L_WBUF = 24576
L_UP = L_WBUF + 28672 + 32
L_DNW = L_WBUF + 2*28672 + 64
L_TOTAL = L_DNW + 28672

LOG2E = 1.4426950408889634
import struct
def fhex(x): return '0x%08x' % struct.unpack('<I', struct.pack('<f', x))[0]
DPPM = 'row_mask:0xf bank_mask:0xf'
GUARD = 1 << 21


class Gen:
    def __init__(self, D=6, catchup=1, prof=False, nslots=29, ntkv='nt', ntw='nt', expper=4, amp=None):
        self.a = Asm()
        self.D = D; self.catchup = catchup; self.prof = prof; self.nslots = nslots
        self.ntkv = ntkv; self.ntw = ntw; self.expper = expper; self.amp = amp
        if amp is not None: self.prof = True
        self.uid = 0

    def lab(self, base):
        self.uid += 1
        return 'L_%s_%d' % (base, self.uid)

    def stamp(self, i):
        if self.prof: self.a('s_memrealtime s[%d:%d]' % (70+2*i, 71+2*i))

    def srd(self, base, lo, size):
        a = self.a
        a('s_mov_b32 s%d, s%d' % (base, lo)); a('s_mov_b32 s%d, s%d' % (base+1, lo+1))
        a('s_mov_b32 s%d, 0x%x' % (base+2, size)); a('s_mov_b32 s%d, 0x20000' % (base+3))

    def guard(self, back):
        a = self.a
        a('s_add_u32 s60, s60, 1'); a('s_cmp_lt_u32 s60, 0x%x' % GUARD); a('s_cbranch_scc1 %s' % back)
        a('s_branch L_exit')

    def allreduce(self, x, t, op='v_add_f32'):
        a = self.a
        for r in (8, 4, 2, 1):
            a('%s_dpp v%d, v%d, v%d row_ror:%d %s' % (op, x, x, x, r, DPPM))
        self.xrows(x, t, op)

    def xrows(self, x, t, op):
        a = self.a
        a('v_mov_b32 v%d, v%d' % (t, x)); a('v_permlane16_swap_b32 v%d, v%d' % (x, t)); a('%s v%d, v%d, v%d' % (op, x, x, t))
        a('v_mov_b32 v%d, v%d' % (t, x)); a('v_permlane32_swap_b32 v%d, v%d' % (x, t)); a('%s v%d, v%d, v%d' % (op, x, x, t))

    def unpack8(self, dst, src):
        a = self.a
        for i in range(4):
            a('v_lshlrev_b32 v%d, 16, v%d' % (dst+2*i, src+i))
            a('v_and_b32 v%d, 0xffff0000, v%d' % (dst+2*i+1, src+i))

    def entry(self):
        a = self.a
        a('s_cmp_ge_u32 s2, 256'); a('s_cbranch_scc1 L_end')
        a('s_load_dwordx16 s[16:31], s[0:1], 0')
        a('s_load_dwordx8 s[32:39], s[0:1], 64')
        a('s_load_dwordx2 s[8:9], s[0:1], 104')
        if self.prof:
            for i in range(70, 102): a('s_mov_b32 s%d, 0' % i)
        self.stamp(0)
        a('v_lshrrev_b32 v1, 6, v0')
        a('v_and_b32 v3, 63, v0')
        a('v_readfirstlane_b32 s3, v1')
        a('s_and_b32 s4, s2, 7')
        a('s_lshr_b32 s5, s2, 3')
        a('s_mov_b32 s10, 0x%x' % WS_SIZE); a('s_mov_b32 s11, 0x20000')
        a('s_mov_b32 s60, 0')
        a('s_cmp_ge_u32 s3, 4'); a('s_cbranch_scc1 L_H')

    def spath(self):
        a = self.a; D = self.D
        VOFF, VM, VL, LANE = 0, 1, 2, 3
        T = [4, 5, 6, 7]
        QX, QY = 8, 16
        ACC0, ACC1, AA, AB = 8, 12, 16, 20
        SLOT0 = 24
        a('v_lshrrev_b32 v4, 4, v3'); a('v_lshlrev_b32 v4, 9, v4')
        a('v_and_b32 v5, 15, v3'); a('v_lshlrev_b32 v5, 4, v5')
        a('s_lshl_b32 s6, s3, 12'); a('s_lshl_b32 s7, s5, 14'); a('s_add_u32 s6, s6, s7')
        a('v_add3_u32 v0, v4, v5, s6')
        a('s_lshl_b32 s6, s4, 24')
        a('s_mov_b32 s7, s6')
        a('v_mov_b32 v1, 0xff800000'); a('v_mov_b32 v2, 0')
        a('s_waitcnt lgkmcnt(0)')
        self.srd(40, 18, 1 << 27); self.srd(44, 20, 1 << 27)
        free = [SLOT0 + 8*i for i in range(self.nslots)]
        gslot = {}; score = {}; spool = []
        vmops = []
        landed = [0]

        def wait_for(n_out):
            n_out = max(n_out, 0)
            if len(vmops) - landed[0] > n_out:
                a('s_waitcnt vmcnt(%d)' % n_out)
                landed[0] = len(vmops) - n_out

        def is_landed(g): return ('g', g, 1) in vmops[:landed[0]]

        def issue(g):
            s = free.pop(0); gslot[g] = s
            if g == 64: a('s_mov_b32 s6, s7')
            elif g % 2 == 0 and g: a('s_add_u32 s6, s6, 0x80000')
            srd = 's[40:43]' if g < 64 else 's[44:47]'
            for u in range(2):
                a('buffer_load_dwordx4 v[%d:%d], v0, %s, s6 offen offset:%d %s' % (s+4*u, s+4*u+3, srd, (g % 2)*2048 + u*256, self.ntkv))
                vmops.append(('g', g, u))

        def kwork(p):
            s0, s1 = gslot[2*p], gslot[2*p+1]
            ch = [(T[0], s0, QX), (T[1], s0, QY), (T[2], s1, QX), (T[3], s1, QY)]
            for i in range(8):
                for (t, s, q) in ch:
                    if i == 0: a('v_dot2_f32_bf16 v%d, v%d, v%d, 0' % (t, s, q))
                    else: a('v_dot2c_f32_bf16 v%d, v%d, v%d' % (t, s+i, q+i))
            a('v_add_f32_dpp v%d, v%d, v%d row_ror:8 %s' % (T[0], T[1], T[0], DPPM))
            a('v_add_f32_dpp v%d, v%d, v%d row_ror:8 %s' % (T[2], T[3], T[2], DPPM))
            for m in ('row_half_mirror', 'quad_perm:[1,0,3,2]', 'quad_perm:[2,3,0,1]'):
                for t in (T[0], T[2]):
                    a('v_add_f32_dpp v%d, v%d, v%d %s %s' % (t, t, t, m, DPPM))
            if not spool:
                spool.extend(range(s0, s0+8)); free.append(s1)
            else:
                free.append(s0); free.append(s1)
            r0, r1 = spool.pop(0), spool.pop(0)
            score[2*p], score[2*p+1] = r0, r1
            a('v_cvt_pk_bf16_f32 v%d, 0, v%d' % (r0, T[0]))
            a('v_cvt_pk_bf16_f32 v%d, 0, v%d' % (r1, T[2]))
            a('v_max3_f32 v%d, v%d, v%d, v%d' % (VM, VM, r0, r1))

        def maxwork():
            self.xrows(VM, T[0], 'v_max_f32')
            a('s_mov_b32 s48, %s' % fhex(LOG2E/16.0))
            a('v_mul_f32 v%d, s48, v%d' % (VM, VM))
            a('v_and_b32 v%d, 1, v%d' % (AA, LANE))
            a('v_lshlrev_b32 v%d, 4, v%d' % (AA, AA))
            a('v_mov_b32 v%d, 0xffff' % (AA+1))
            a('v_lshlrev_b32 v%d, v%d, v%d' % (AA, AA, AA+1))
            a('v_bfe_u32 v%d, v%d, 1, 2' % (AA+1, LANE))
            for r in range(4):
                a('v_cmp_eq_u32 vcc, %d, v%d' % (r, AA+1))
                a('v_cndmask_b32 v%d, 0, v%d, vcc' % (T[r], AA))
            for r in range(8): a('v_mov_b32 v%d, 0' % (ACC0+r))

        def expwork(p):
            r0, r1 = score[2*p], score[2*p+1]
            a('v_fma_f32 v%d, v%d, s48, -v%d' % (r0, r0, VM))
            a('v_fma_f32 v%d, v%d, s48, -v%d' % (r1, r1, VM))
            a('v_exp_f32 v%d, v%d' % (r0, r0)); a('v_exp_f32 v%d, v%d' % (r1, r1))
            a('v_add_f32 v%d, v%d, v%d' % (VL, VL, r0)); a('v_cvt_pk_bf16_f32 v%d, v%d, v%d' % (r0, r0, r0))
            a('v_add_f32 v%d, v%d, v%d' % (VL, VL, r1)); a('v_cvt_pk_bf16_f32 v%d, v%d, v%d' % (r1, r1, r1))

        def mlwork():
            s = free.pop(0)
            self.xrows(VL, s, 'v_add_f32')
            a('v_min_u32 v%d, 0xfffffffe, v%d' % (s, VM)); a('v_min_u32 v%d, 0xfffffffe, v%d' % (s+1, VL))
            a('v_lshlrev_b32 v%d, 7, v%d' % (s+2, LANE))
            a('s_lshl_b32 s49, s4, 11'); a('s_lshl_b32 s50, s5, 5'); a('s_add_u32 s49, s49, s50')
            a('s_lshl_b32 s50, s3, 3'); a('s_add_u32 s49, s49, s50'); a('s_add_u32 s49, s49, 0x%x' % WS_ML)
            a('s_mov_b64 exec, 0x101')
            a('buffer_store_dwordx2 v[%d:%d], v%d, s[8:11], s49 offen sc1' % (s, s+1, s+2))
            a('s_mov_b64 exec, -1')
            vmops.append(('ml',))
            self.stamp(3)

        def vprep(g):
            A = AA if g % 2 == 0 else AB
            for r in range(4): a('v_and_b32 v%d, v%d, v%d' % (A+r, T[r], score[g-64]))

        def vwork(g, prepped=False):
            A = AA if g % 2 == 0 else AB
            if not prepped: vprep(g)
            s = gslot[g]
            a('v_mfma_f32_16x16x32_bf16 v[%d:%d], v[%d:%d], v[%d:%d], v[%d:%d]' % (ACC0, ACC0+3, A, A+3, s, s+3, ACC0, ACC0+3))
            a('v_mfma_f32_16x16x32_bf16 v[%d:%d], v[%d:%d], v[%d:%d], v[%d:%d]' % (ACC1, ACC1+3, A, A+3, s+4, s+7, ACC1, ACC1+3))
            free.append(s)

        g = 0
        while g < D//2: issue(g); g += 1
        a('s_barrier')
        while free:
            wait_for(D-2); issue(g); g += 1
        self.stamp(1)
        a('s_barrier')
        self.stamp(2)
        a('v_and_b32 v4, 15, v3'); a('v_lshlrev_b32 v5, 4, v4')
        a('v_lshrrev_b32 v4, 3, v4'); a('v_lshlrev_b32 v4, 9, v4')
        a('v_add_u32 v5, v5, v4'); a('v_xor_b32 v6, 0x200, v5')
        a('ds_read_b128 v[%d:%d], v5 offset:%d' % (QX, QX+3, L_QV))
        a('ds_read_b128 v[%d:%d], v5 offset:%d' % (QX+4, QX+7, L_QV+256))
        a('ds_read_b128 v[%d:%d], v6 offset:%d' % (QY, QY+3, L_QV))
        a('ds_read_b128 v[%d:%d], v6 offset:%d' % (QY+4, QY+7, L_QV+256))
        a('s_waitcnt lgkmcnt(0)')
        kp = 0; ep = 0; vg = 64; st = {'max': False, 'ml': False}

        def do_work():
            nonlocal kp, ep, vg
            n = 0
            while kp < 32 and n < self.catchup and is_landed(2*kp+1):
                kwork(kp); kp += 1; n += 1
            if kp == 32 and not st['max']:
                maxwork(); st['max'] = True
            if st['max']:
                n = 0
                while ep < 32 and n < self.expper:
                    expwork(ep); ep += 1; n += 1
                if ep == 32 and not st['ml']:
                    mlwork(); st['ml'] = True
                n = 0
                while vg < 128 and n < 3 and is_landed(vg) and (vg-64)//2 < ep:
                    vwork(vg); vg += 1; n += 1

        while g < 128:
            if not free:
                do_work()
                assert free
                wait_for(D-2); issue(g); g += 1
            else:
                wait_for(D-2); issue(g); g += 1
                do_work()
        assert st['ml'] and kp == 32
        s = free.pop(0)
        a('v_and_b32 v%d, 15, v3' % s); a('v_lshlrev_b32 v%d, 5, v%d' % (s, s))
        a('v_bfe_u32 v%d, v3, 4, 1' % (s+1)); a('v_lshl_add_u32 v%d, v%d, 4, v%d' % (s, s+1, s))
        a('v_lshrrev_b32 v%d, 5, v3' % (s+1)); a('v_lshl_add_u32 v%d, v%d, 10, v%d' % (s, s+1, s))
        a('s_lshl_b32 s49, s3, 11'); a('v_add_u32 v%d, s49, v%d' % (s, s))
        while vg < 128:
            vprep(vg)
            if not is_landed(vg):
                wait_for(len(vmops) - (vmops.index(('g', vg, 1)) + 1))
            vwork(vg, True); vg += 1
        self.stamp(4)
        a('ds_write_b128 v%d, v[%d:%d] offset:%d' % (s, ACC0, ACC0+3, L_ACC))
        a('ds_write_b128 v%d, v[%d:%d] offset:%d' % (s, ACC1, ACC1+3, L_ACC+512))
        a('s_waitcnt lgkmcnt(0)')
        a('s_barrier')
        self.stamp(5)
        a('s_branch L_exit')

    def hbarrier(self):
        a = self.a; l = self.lab('hb')
        a('s_mov_b64 exec, 1')
        a('v_mov_b32 v4, 0'); a('v_mov_b32 v5, 1')
        a('ds_add_u32 v4, v5 offset:%d' % L_CNT)
        a(l + ':')
        a('ds_read_b32 v5, v4 offset:%d' % L_CNT)
        a('s_waitcnt lgkmcnt(0)')
        a('v_cmp_le_u32 vcc, 4, v5')
        a('s_cbranch_vccnz %s_ok' % l)
        self.guard(l)
        a(l + '_ok:')
        a('s_mov_b64 exec, -1')

    def dma64(self, nins, rs_sgpr, paced):
        a = self.a
        a('v_lshrrev_b32 v4, 3, v3')
        a('v_mul_lo_u32 v5, v4, s%d' % rs_sgpr)
        a('v_and_b32 v6, 7, v3')
        a('v_and_b32 v4, 2, v4')
        a('v_xor_b32 v6, v6, v4')
        a('v_lshl_add_u32 v8, v6, 4, v5')
        a('v_xor_b32 v6, 4, v6')
        a('v_lshl_add_u32 v9, v6, 4, v5')
        a('s_lshl_b32 s53, s%d, 3' % rs_sgpr)
        a('s_mul_i32 s54, s12, %d' % nins)
        a('s_mul_i32 s55, s54, s53'); a('s_add_u32 s52, s52, s55')
        a('s_lshl_b32 s54, s54, 10'); a('s_add_u32 s54, s54, %d' % L_WBUF)
        for i in range(nins):
            a('s_add_u32 m0, s54, %d' % (i*1024))
            if paced and i: a('s_waitcnt vmcnt(0)')
            a('buffer_load_dwordx4 v%d, s[40:43], s52 offen %s lds' % (8 + i % 2, self.ntw))
            if i+1 < nins: a('s_add_u32 s52, s52, s53')

    def trread64(self, nk, B):
        a = self.a
        a('v_lshrrev_b32 v4, 4, v3')
        a('v_bfe_u32 v5, v3, 2, 2')
        a('v_lshl_add_u32 v6, v4, 3, v5'); a('v_lshlrev_b32 v6, 7, v6')
        a('v_and_b32 v4, 1, v4'); a('v_lshlrev_b32 v4, 2, v4')
        a('v_and_b32 v5, 2, v5'); a('v_or_b32 v4, v4, v5')
        a('v_bfe_u32 v5, v3, 1, 1'); a('s_lshl_b32 s53, s12, 1'); a('v_add_u32 v5, s53, v5')
        a('v_xor_b32 v4, v4, v5'); a('v_lshl_add_u32 v6, v4, 4, v6')
        a('v_and_b32 v5, 1, v3'); a('v_lshl_add_u32 v6, v5, 3, v6')
        a('v_add_u32 v6, %d, v6' % L_WBUF)
        for i in range(nk):
            for b in range(2):
                r = B + 4*i + 2*b
                a('ds_read_b64_tr_b16 v[%d:%d], v6 offset:%d' % (r, r+1, i*4096 + b*512))

    def mfma_chain(self, nk, vaddr, off0, step, A, B, Dr):
        a = self.a
        for i in range(nk):
            a('ds_read_b128 v[%d:%d], v%d offset:%d' % (A+4*i, A+4*i+3, vaddr, off0 + i*step))
        for i in range(nk):
            a('s_waitcnt lgkmcnt(%d)' % min(nk-1-i, 15))
            c = '0' if i == 0 else 'v[%d:%d]' % (Dr, Dr+3)
            a('v_mfma_f32_16x16x32_bf16 v[%d:%d], v[%d:%d], v[%d:%d], %s' % (Dr, Dr+3, A+4*i, A+4*i+3, B+4*i, B+4*i+3, c))

    def poll_tagged(self, loads, nreg, R, sleep=0):
        a = self.a; l = self.lab('pt')
        a(l + ':')
        for x in loads: a(x)
        a('s_waitcnt vmcnt(0)')
        for i in range(nreg): a('v_xor_b32 v%d, s%d, v%d' % (R+i, 14 + i % 2, R+i))
        a('v_or_b32 v4, v%d, v%d' % (R, R+1))
        for i in range(2, nreg, 2): a('v_or3_b32 v4, v4, v%d, v%d' % (R+i, R+i+1))
        a('v_and_b32 v4, 0xffff, v4')
        a('v_cmp_ne_u32 vcc, 0, v4')
        a('s_cbranch_vccz %s_ok' % l)
        if sleep: a('s_sleep %d' % sleep)
        self.guard(l)
        a(l + '_ok:')

    def poll_sent(self, loads, nreg, R, sleep=0):
        a = self.a; l = self.lab('ps')
        a(l + ':')
        for x in loads: a(x)
        n = len(loads); per = nreg // n
        for k in range(n):
            a('s_waitcnt vmcnt(%d)' % (n-1-k))
            for i in range(k*per, (k+1)*per, 2):
                if i == 0: a('v_max_u32 v4, v%d, v%d' % (R, R+1))
                else: a('v_max3_u32 v4, v4, v%d, v%d' % (R+i, R+i+1))
        a('v_cmp_eq_u32 vcc, -1, v4')
        a('s_cbranch_vccz %s_ok' % l)
        if sleep: a('s_sleep %d' % sleep)
        self.guard(l)
        a(l + '_ok:')

    def hpath(self):
        a = self.a
        B = 64; A = 160; Dr = 16
        a('L_H:')
        a('s_sub_u32 s12, s3, 4')
        a('v_mov_b32 v4, 0')
        a('ds_write_b32 v4, v4 offset:%d' % L_CNT)
        a('v_mov_b32 v230, 0')
        a('v_min_u32 v2, 55, v3')
        a('v_cmp_gt_u32 s[62:63], 56, v3')
        a('s_waitcnt lgkmcnt(0)')
        a('s_barrier')
        a('buffer_load_dword v1, v4, s[8:11], 0 offen sc1')
        a('s_cmp_ge_u32 s5, 24'); a('s_cbranch_scc1 L_P2')
        a('s_lshl_b32 s13, s5, 3'); a('s_add_u32 s13, s13, s4')
        a('s_cmp_lt_u32 s13, 42'); a('s_cbranch_scc1 L_P1')
        a('s_waitcnt vmcnt(0)')
        self.tags()
        a('s_branch L_Q')

        a('L_P1:')
        self.srd(44, 34, 896)
        a('v_lshlrev_b32 v5, 4, v2')
        a('buffer_load_dwordx4 v[20:23], v5, s[44:47], 0 offen')
        self.srd(40, 36, 448*5376)
        a('s_mov_b32 s51, 5376'); a('s_lshl_b32 s52, s13, 7')
        self.dma64(14, 51, False)
        l = self.lab('nc')
        a('s_cmp_lt_u32 s13, 14'); a('s_cbranch_scc0 %s' % l)
        for r in range(4): a('v_mov_b32 v%d, -1' % (12+r))
        a('v_lshlrev_b32 v5, 4, v3')
        a('s_mul_i32 s53, s13, 12288'); a('s_mul_i32 s54, s12, 3072'); a('s_add_u32 s53, s53, s54'); a('s_add_u32 s53, s53, 0x%x' % WS_ATT)
        for i in range(3): a('buffer_store_dwordx4 v[12:15], v5, s[8:11], s53 offen offset:%d sc1' % (i*1024))
        a(l + ':')
        a('s_waitcnt vmcnt(14)')
        self.tags()
        self.unpack8(24, 20)
        a('s_mov_b32 s53, %s' % fhex(-LOG2E))
        for i in range(8): a('v_mul_f32 v%d, s53, v%d' % (32+i, 24+i))
        for i in range(8): a('v_exp_f32 v%d, v%d' % (32+i, 32+i))
        for i in range(8): a('v_add_f32 v%d, 1.0, v%d' % (32+i, 32+i))
        for i in range(8): a('v_rcp_f32 v%d, v%d' % (32+i, 32+i))
        for i in range(8): a('v_mul_f32 v%d, v%d, v%d' % (32+i, 32+i, 24+i))
        for i in range(4): a('v_cvt_pk_bf16_f32 v%d, v%d, v%d' % (20+i, 32+2*i, 33+2*i))
        a('s_lshl_b32 s53, s12, 10'); a('v_lshl_add_u32 v10, v3, 4, s53')
        a('ds_write_b128 v10, v[20:23] offset:%d' % L_AV)
        a('s_lshl_b32 s56, s13, 8'); a('s_add_u32 s56, s56, 0x%x' % WS_MOD)
        a('s_waitcnt vmcnt(0)')
        self.stamp(1)
        self.hbarrier()
        self.trread64(14, B)
        a('s_branch L_PG')

        a('L_P2:')
        self.srd(44, 16, 896)
        a('v_lshlrev_b32 v5, 4, v2')
        a('buffer_load_dwordx4 v[20:23], v5, s[44:47], 0 offen')
        self.srd(40, 22, 448*8192)
        a('s_sub_u32 s13, s5, 24'); a('s_lshl_b32 s53, s4, 3'); a('s_add_u32 s13, s13, s53')
        a('s_mov_b32 s51, 8192'); a('s_lshl_b32 s52, s13, 7')
        self.dma64(14, 51, False)
        for r in range(4): a('v_mov_b32 v%d, -1' % (12+r))
        a('v_lshlrev_b32 v5, 4, v3')
        a('s_lshl_b32 s53, s13, 13'); a('s_lshl_b32 s54, s12, 11'); a('s_add_u32 s53, s53, s54'); a('s_add_u32 s53, s53, 0x%x' % WS_PART)
        for i in range(2): a('buffer_store_dwordx4 v[12:15], v5, s[8:11], s53 offen offset:%d sc1' % (i*1024))
        a('s_lshl_b32 s53, s13, 8'); a('s_lshl_b32 s54, s12, 6'); a('s_add_u32 s53, s53, s54'); a('s_add_u32 s53, s53, 0x%x' % WS_ML)
        a('s_mov_b64 exec, 15')
        a('buffer_store_dwordx4 v[12:15], v5, s[8:11], s53 offen sc1')
        a('s_mov_b64 exec, -1')
        a('s_waitcnt vmcnt(14)')
        self.tags()
        self.unpack8(24, 20)
        a('v_add_f32 v32, v24, v25')
        for i in range(2, 8): a('v_add_f32 v32, v32, v%d' % (24+i))
        a('v_cndmask_b32 v32, 0, v32, s[62:63]')
        self.allreduce(32, 33)
        a('v_mul_f32 v32, %s, v32' % fhex(1.0/448))
        for i in range(8): a('v_sub_f32 v%d, v%d, v32' % (40+i, 24+i))
        a('v_mul_f32 v34, v40, v40')
        for i in range(1, 8): a('v_fmac_f32 v34, v%d, v%d' % (40+i, 40+i))
        a('v_cndmask_b32 v34, 0, v34, s[62:63]')
        self.allreduce(34, 33)
        a('v_mul_f32 v34, %s, v34' % fhex(1.0/448))
        a('v_cvt_pk_bf16_f32 v34, 0, v34')
        a('v_add_f32 v34, %s, v34' % fhex(1e-5))
        a('v_cvt_pk_bf16_f32 v34, 0, v34')
        a('v_sqrt_f32 v34, v34')
        a('v_cvt_pk_bf16_f32 v32, 0, v32')
        a('v_cvt_pk_bf16_f32 v34, 0, v34')
        a('v_rcp_f32 v34, v34')
        for i in range(8): a('v_sub_f32 v%d, v%d, v32' % (24+i, 24+i))
        for i in range(8): a('v_cvt_pk_bf16_f32 v%d, 0, v%d' % (24+i, 24+i))
        for i in range(8): a('v_mul_f32 v%d, v34, v%d' % (24+i, 24+i))
        for i in range(8): a('v_cvt_pk_bf16_f32 v%d, 0, v%d' % (24+i, 24+i))
        a('s_lshl_b32 s56, s13, 8'); a('s_add_u32 s56, s56, 0x%x' % WS_Q)
        a('s_waitcnt vmcnt(0)')
        self.stamp(1)
        self.hbarrier()
        self.trread64(14, B)
        a('v_lshlrev_b32 v5, 5, v2')
        a('s_mov_b32 s53, 0x%x' % WS_MOD)
        self.poll_tagged(['buffer_load_dwordx4 v[32:35], v5, s[8:11], s53 offen sc1',
                          'buffer_load_dwordx4 v[36:39], v5, s[8:11], s53 offen offset:16 sc1',
                          'buffer_load_dwordx4 v[40:43], v5, s[8:11], s53 offen offset:1792 sc1',
                          'buffer_load_dwordx4 v[44:47], v5, s[8:11], s53 offen offset:1808 sc1'], 16, 32)
        self.stamp(2)
        for i in range(8): a('v_add_f32 v%d, 1.0, v%d' % (40+i, 40+i))
        for i in range(8): a('v_cvt_pk_bf16_f32 v%d, 0, v%d' % (40+i, 40+i))
        for i in range(8): a('v_mul_f32 v%d, v%d, v%d' % (40+i, 40+i, 24+i))
        for i in range(8): a('v_cvt_pk_bf16_f32 v%d, 0, v%d' % (40+i, 40+i))
        for i in range(8): a('v_add_f32 v%d, v%d, v%d' % (40+i, 40+i, 32+i))
        for i in range(4): a('v_cvt_pk_bf16_f32 v%d, v%d, v%d' % (20+i, 40+2*i, 41+2*i))
        a('s_lshl_b32 s53, s12, 10'); a('v_lshl_add_u32 v10, v3, 4, s53')
        a('ds_write_b128 v10, v[20:23] offset:%d' % L_AV)

        a('L_PG:')
        a('v_lshrrev_b32 v10, 4, v3'); a('s_lshl_b32 s53, s12, 10'); a('v_lshl_add_u32 v10, v10, 4, s53')
        a('v_and_b32 v11, 1, v3'); a('v_lshlrev_b32 v11, 15, v11'); a('v_xor_b32 v11, s14, v11')
        a('v_lshlrev_b32 v5, 2, v3'); a('s_lshl_b32 s53, s12, 6'); a('s_add_u32 s56, s56, s53')
        a('s_waitcnt lgkmcnt(0)')
        self.mfma_chain(14, 10, L_AV, 64, A, B, Dr)
        a('v_cvt_pk_bf16_f32 v%d, 0, v%d' % (Dr, Dr))
        a('v_or_b32 v%d, v%d, v11' % (Dr, Dr))
        a('s_mov_b64 exec, 0xffff')
        a('buffer_store_dword v%d, v5, s[8:11], s56 offen sc1' % Dr)
        a('s_mov_b64 exec, -1')
        self.stamp(3)

        a('L_Q:')
        a('s_cmp_eq_u32 s12, 0'); a('s_cbranch_scc0 L_B1')
        a('v_lshlrev_b32 v5, 5, v3')
        a('s_lshl_b32 s53, s4, 11'); a('s_add_u32 s53, s53, 0x%x' % WS_Q)
        self.poll_tagged(['buffer_load_dwordx4 v[32:35], v5, s[8:11], s53 offen sc1',
                          'buffer_load_dwordx4 v[36:39], v5, s[8:11], s53 offen offset:16 sc1'], 8, 32, sleep=2)
        a('s_mov_b32 s53, 0x07060302')
        for i in range(4): a('v_perm_b32 v%d, v%d, v%d, s53' % (20+i, 33+2*i, 32+2*i))
        a('v_lshlrev_b32 v5, 4, v3')
        a('ds_write_b128 v5, v[20:23] offset:%d' % L_QV)
        a('L_B1:')
        a('s_waitcnt lgkmcnt(0)')
        self.stamp(4)
        a('s_barrier')

        a('s_cmp_lt_u32 s5, 14'); a('s_cbranch_scc1 L_S1')
        a('s_cmp_lt_u32 s5, 21'); a('s_cbranch_scc1 L_S2')
        a('s_branch L_S3')
        a('L_S1:')
        self.srd(40, 24, 4096*896)
        a('s_and_b32 s53, s5, 1'); a('s_lshl_b32 s13, s4, 1'); a('s_add_u32 s13, s13, s53')
        a('s_mul_i32 s52, s13, %d' % (256*896))
        a('s_lshr_b32 s53, s5, 1'); a('s_lshl_b32 s53, s53, 7'); a('s_add_u32 s52, s52, s53')
        a('s_mov_b32 s51, 896')
        self.dma64(8, 51, True)
        a('s_branch L_ML')

        a('L_S2:')
        a('s_mul_i32 s13, s4, 7'); a('s_add_u32 s13, s13, s5'); a('s_sub_u32 s13, s13, 14')
        self.srd(40, 28, 448*3584); self.srd(44, 30, 448*3584); self.srd(48, 32, 1792*896)
        a('v_lshrrev_b32 v4, 2, v3'); a('v_mul_u32_u24 v4, 3584, v4'); a('v_and_b32 v5, 3, v3'); a('v_lshl_add_u32 v8, v5, 4, v4')
        a('v_lshlrev_b32 v9, 4, v3')
        a('s_lshl_b32 s52, s13, 6'); a('s_mul_i32 s53, s12, %d' % (112*3584)); a('s_add_u32 s52, s52, s53')
        a('s_mul_i32 s54, s12, 7168')
        a('s_mul_i32 s55, s13, 28672'); a('s_add_u32 s55, s55, s54')
        for i in range(7):
            a('s_add_u32 m0, s54, %d' % (L_WBUF + i*1024))
            a('s_waitcnt vmcnt(0)')
            a('buffer_load_dwordx4 v8, s[40:43], s52 offen %s lds' % self.ntw)
            a('s_add_u32 m0, s54, %d' % (L_UP + i*1024))
            a('s_waitcnt vmcnt(0)')
            a('buffer_load_dwordx4 v8, s[44:47], s52 offen %s lds' % self.ntw)
            a('s_add_u32 m0, s54, %d' % (L_DNW + i*1024))
            a('s_add_u32 s52, s52, %d' % (16*3584))
            a('buffer_load_dwordx4 v9, s[48:51], s55 offen %s lds' % self.ntw)
            a('s_add_u32 s55, s55, 1024')
        self.srd(44, 16, 896)
        a('v_lshlrev_b32 v5, 4, v2')
        a('buffer_load_dwordx4 v[20:23], v5, s[44:47], 0 offen')
        a('v_lshlrev_b32 v5, 5, v2')
        a('s_mov_b32 s53, 0x%x' % (WS_MOD + 896*4))
        self.poll_tagged(['buffer_load_dwordx4 v[%d:%d], v5, s[8:11], s53 offen offset:%d sc1' % (224+4*k, 227+4*k, (k//2)*1792 + (k % 2)*16) for k in range(6)], 24, 224, sleep=8)
        self.unpack8(248, 20)
        for i in range(8): a('v_add_f32 v%d, 1.0, v%d' % (240+i, 240+i))
        a('s_branch L_ML')

        a('L_S3:')
        a('s_sub_u32 s13, s5, 21'); a('s_lshl_b32 s13, s13, 3'); a('s_add_u32 s13, s13, s4')
        a('s_cmp_lt_u32 s13, 28'); a('s_cbranch_scc0 L_ML')
        a('s_cmp_eq_u32 s12, 2'); a('s_cbranch_scc0 L_ML')
        a('v_bfe_u32 v4, v3, 4, 1'); a('v_lshrrev_b32 v5, 5, v3'); a('v_lshl_add_u32 v4, v4, 1, v5')
        a('v_and_b32 v5, 3, v3'); a('v_lshl_add_u32 v4, v5, 2, v4')
        a('s_lshl_b32 s53, s13, 4'); a('v_add_u32 v4, s53, v4')
        a('v_lshlrev_b32 v230, 1, v4')
        a('v_lshlrev_b32 v5, 2, v4')
        a('v_and_b32 v6, 1, v4'); a('v_lshlrev_b32 v6, 15, v6'); a('v_xor_b32 v6, s14, v6')
        self.srd(44, 16, 896)
        a('buffer_load_ushort v226, v230, s[44:47], 0 offen')
        a('s_mov_b32 s53, 0x%x' % (WS_MOD + 896*4)); a('s_mov_b32 s54, 0x%x' % (WS_MOD + 2240*4))
        l = self.lab('e3m')
        a(l + ':')
        a('buffer_load_dword v224, v5, s[8:11], s53 offen sc1')
        a('buffer_load_dword v225, v5, s[8:11], s54 offen sc1')
        a('s_waitcnt vmcnt(0)')
        a('v_xor_b32 v224, v224, v6'); a('v_xor_b32 v225, v225, v6')
        a('v_or_b32 v4, v224, v225'); a('v_and_b32 v4, 0xffff, v4')
        a('v_cmp_ne_u32 vcc, 0, v4')
        a('s_cbranch_vccz %s_ok' % l)
        a('s_sleep 8')
        self.guard(l)
        a(l + '_ok:')
        a('v_lshlrev_b32 v226, 16, v226')

        a('L_ML:')
        self.stamp(5)
        a('s_cmp_lt_u32 s12, 2'); a('s_cbranch_scc0 L_B2')
        a('v_lshlrev_b32 v5, 4, v3')
        a('s_lshl_b32 s57, s4, 1'); a('s_add_u32 s57, s57, s12')
        a('s_lshl_b32 s53, s57, 10'); a('s_add_u32 s53, s53, 0x%x' % WS_ML)
        self.poll_sent(['buffer_load_dwordx4 v[32:35], v5, s[8:11], s53 offen sc1'], 4, 32, sleep=32)
        a('v_max_f32 v36, v32, v34')
        self.allreduce(36, 37, 'v_max_f32')
        a('v_sub_f32 v32, v32, v36'); a('v_sub_f32 v34, v34, v36')
        a('v_exp_f32 v32, v32'); a('v_exp_f32 v34, v34')
        a('v_mul_f32 v36, v32, v33'); a('v_fmac_f32 v36, v34, v35')
        self.allreduce(36, 37)
        a('v_rcp_f32 v36, v36')
        a('s_lshl_b32 s53, s5, 1'); a('s_add_u32 s54, s53, 1')
        a('v_mul_f32 v32, v32, v36'); a('v_mul_f32 v34, v34, v36')
        a('v_readlane_b32 s64, v32, s53'); a('v_readlane_b32 s65, v34, s53')
        a('v_readlane_b32 s66, v32, s54'); a('v_readlane_b32 s67, v34, s54')
        a('s_lshl_b32 s53, s12, 10'); a('v_add_u32 v10, s53, v5')
        a('s_lshl_b32 s58, s57, 5'); a('s_add_u32 s58, s58, s5'); a('s_lshl_b32 s58, s58, 10'); a('s_add_u32 s58, s58, 0x%x' % WS_PART)
        self.stamp(6)
        a('s_waitcnt vmcnt(0)')
        a('s_barrier')
        self.stamp(7)
        for w in range(4): a('ds_read_b128 v[%d:%d], v10 offset:%d' % (32+4*w, 35+4*w, L_ACC + w*2048))
        for w in range(4):
            a('s_waitcnt lgkmcnt(%d)' % (3-w))
            for r in range(4):
                if w == 0: a('v_mul_f32 v%d, s64, v%d' % (20+r, 32+r))
                else: a('v_fmac_f32 v%d, s%d, v%d' % (20+r, 64+w, 32+4*w+r))
        for r in range(4): a('v_min_u32 v%d, 0xfffffffe, v%d' % (20+r, 20+r))
        a('buffer_store_dwordx4 v[20:23], v5, s[8:11], s58 offen sc1')
        self.stamp(8)
        a('s_branch L_E')
        a('L_B2:')
        a('s_waitcnt vmcnt(0)')
        a('s_barrier')
        self.stamp(7)
        a('L_E:')
        a('s_cmp_lt_u32 s5, 14'); a('s_cbranch_scc1 L_E1')
        a('s_cmp_lt_u32 s5, 21'); a('s_cbranch_scc1 L_E2')
        a('s_cmp_lt_u32 s13, 28'); a('s_cbranch_scc0 L_exit')
        a('s_cmp_eq_u32 s12, 2'); a('s_cbranch_scc0 L_exit')

        a('v_lshrrev_b32 v4, 2, v3'); a('v_mul_u32_u24 v4, 1792, v4'); a('v_and_b32 v5, 3, v3'); a('v_lshl_add_u32 v5, v5, 4, v4')
        a('s_lshl_b32 s53, s13, 6'); a('s_add_u32 s54, s53, 0x%x' % WS_ATT)
        self.poll_sent(['buffer_load_dwordx4 v[32:35], v5, s[8:11], s54 offen sc1'], 4, 32)
        self.stamp(9)
        l = self.lab('ep')
        a('s_cmp_eq_u32 s13, 0'); a('s_cbranch_scc0 %s' % l)
        a('v_mov_b32 v6, 0'); a('v_mov_b32 v7, s61')
        a('s_mov_b64 exec, 1')
        a('buffer_store_dword v7, v6, s[8:11], 0 offen sc1')
        a('s_mov_b64 exec, -1')
        a(l + ':')
        self.red16(32)
        a('v_fmac_f32 v226, v224, v32')
        self.srd(40, 8, WS_DN_END)
        self.srd(44, 38, 896)
        for i in range(4): a('s_add_u32 s%d, s53, 0x%x' % (54+i, WS_DN + i*16*1792))
        a('v_add_u32 v6, s57, v5')
        self.poll_sent(['buffer_load_dwordx4 v[%d:%d], v5, s[40:43], s%d offen sc1' % (32+4*i, 35+4*i, 54+i) for i in range(3)] +
                       ['buffer_load_dwordx4 v[44:47], v6, s[40:43], 0 offen sc1'], 16, 32)
        self.stamp(10)
        a('v_pk_add_f32 v[32:33], v[32:33], v[36:37]'); a('v_pk_add_f32 v[34:35], v[34:35], v[38:39]')
        a('v_pk_add_f32 v[40:41], v[40:41], v[44:45]'); a('v_pk_add_f32 v[42:43], v[42:43], v[46:47]')
        a('v_pk_add_f32 v[32:33], v[32:33], v[40:41]'); a('v_pk_add_f32 v[34:35], v[34:35], v[42:43]')
        self.red16(32)
        a('v_fmac_f32 v226, v225, v32')
        a('v_cvt_pk_bf16_f32 v226, v226, v226')
        a('s_mov_b32 exec_lo, 0x000f000f'); a('s_mov_b32 exec_hi, 0x000f000f')
        a('buffer_store_short v226, v230, s[44:47], 0 offen')
        a('s_mov_b64 exec, -1')
        self.stamp(11)
        if self.amp is not None:
            a('s_cmp_eq_u32 s13, 0'); a('s_cbranch_scc0 L_exit')
            a('s_waitcnt lgkmcnt(0)')
            a('s_sub_u32 s53, s%d, s70' % (70+2*self.amp))
            a('L_amp:')
            a('s_memrealtime s[54:55]'); a('s_waitcnt lgkmcnt(0)')
            a('s_sub_u32 s54, s54, s92'); a('s_cmp_lt_u32 s54, s53'); a('s_cbranch_scc0 L_exit')
            self.guard('L_amp')
        a('s_branch L_exit')

        a('L_E1:')
        self.trread64(8, B)
        a('v_lshlrev_b32 v5, 4, v3')
        a('s_lshl_b32 s53, s13, 15'); a('s_lshl_b32 s54, s12, 13'); a('s_add_u32 s53, s53, s54'); a('s_add_u32 s53, s53, 0x%x' % WS_PART)
        a('s_add_u32 s54, s53, 4096')
        a('s_mul_i32 s55, s12, 576'); a('v_lshl_add_u32 v10, v3, 3, s55')
        a('v_and_b32 v11, 3, v3'); a('v_mul_u32_u24 v11, 576, v11'); a('v_lshrrev_b32 v12, 4, v3'); a('v_lshl_add_u32 v11, v12, 4, v11')
        a('s_mul_i32 s56, s13, 1792'); a('s_lshr_b32 s55, s5, 1'); a('s_lshl_b32 s55, s55, 8'); a('s_add_u32 s56, s56, s55')
        a('s_lshl_b32 s55, s12, 6'); a('s_add_u32 s56, s56, s55'); a('s_add_u32 s56, s56, 0x%x' % WS_ATT)
        a('v_lshlrev_b32 v12, 2, v3')
        R = 100
        self.poll_sent(['buffer_load_dwordx4 v[%d:%d], v5, s[8:11], s%d offen offset:%d sc1' % (R+4*i, R+3+4*i, 53 + i//4, (i % 4)*1024) for i in range(8)], 32, R)
        self.stamp(9)
        for st in (16, 8, 4):
            for i in range(0, st, 2):
                a('v_pk_add_f32 v[%d:%d], v[%d:%d], v[%d:%d]' % (R+i, R+i+1, R+i, R+i+1, R+st+i, R+st+i+1))
        a('v_cvt_pk_bf16_f32 v20, v%d, v%d' % (R, R+1)); a('v_cvt_pk_bf16_f32 v21, v%d, v%d' % (R+2, R+3))
        a('ds_write_b64 v10, v[20:21] offset:%d' % L_RED)
        a('s_waitcnt lgkmcnt(0)')
        a('s_barrier')
        self.stamp(10)
        self.mfma_chain(8, 11, L_RED, 64, A, B, Dr)
        a('v_add_f32 v%d, v%d, v%d' % (Dr, Dr, Dr+1)); a('v_add_f32 v%d, v%d, v%d' % (Dr+2, Dr+2, Dr+3))
        a('v_add_f32 v%d, v%d, v%d' % (Dr, Dr, Dr+2))
        a('v_min_u32 v%d, 0xfffffffe, v%d' % (Dr, Dr))
        a('s_mov_b64 exec, 0xffff')
        a('buffer_store_dword v%d, v12, s[8:11], s56 offen sc1' % Dr)
        a('s_mov_b64 exec, -1')
        self.stamp(11)
        a('s_branch L_exit')

        a('L_E2:')
        B2 = 120
        a('v_lshrrev_b32 v4, 4, v3'); a('v_bfe_u32 v5, v3, 2, 2'); a('v_lshl_add_u32 v4, v4, 3, v5')
        a('v_lshlrev_b32 v6, 6, v4'); a('v_and_b32 v5, 1, v3'); a('v_lshl_add_u32 v6, v5, 3, v6')
        a('v_bfe_u32 v5, v3, 1, 1'); a('v_mul_u32_u24 v5, %d, v5' % (L_UP - L_WBUF)); a('v_add_u32 v6, v6, v5')
        a('s_lshl_b32 s53, s12, 4'); a('s_add_u32 s53, s53, %d' % L_WBUF); a('v_add_u32 v6, s53, v6')
        for i in range(14):
            for b in range(2):
                r = B + 4*i + 2*b
                a('ds_read_b64_tr_b16 v[%d:%d], v6 offset:%d' % (r, r+1, i*2048 + b*256))
        a('v_mul_u32_u24 v6, 896, v4'); a('v_and_b32 v5, 3, v3'); a('v_lshl_add_u32 v6, v5, 3, v6')
        a('s_mul_i32 s53, s12, 224'); a('s_add_u32 s53, s53, %d' % L_DNW); a('v_add_u32 v6, s53, v6')
        for t in range(7):
            for b in range(2):
                r = B2 + 4*t + 2*b
                a('ds_read_b64_tr_b16 v[%d:%d], v6 offset:%d' % (r, r+1, t*32 + b*4*896))
        a('v_lshlrev_b32 v5, 5, v2')
        a('s_mul_i32 s53, s12, %d' % (4*1792)); a('s_add_u32 s53, s53, 0x%x' % WS_ATT); a('s_add_u32 s54, s53, %d' % (2*1792))
        a('s_lshl_b32 s55, s12, 11'); a('v_lshl_add_u32 v10, v3, 4, s55')
        a('v_lshlrev_b32 v11, 4, v3')
        a('s_lshl_b32 s55, s12, 10'); a('v_lshl_add_u32 v12, v3, 4, s55')
        a('v_lshrrev_b32 v13, 4, v3'); a('v_lshlrev_b32 v14, 4, v13'); a('v_add_u32 v13, s55, v14')
        a('s_lshl_b32 s55, s12, 4'); a('v_lshl_add_u32 v15, v3, 1, s55')
        a('v_lshlrev_b32 v9, 2, v3')
        a('s_mul_i32 s56, s13, 1792'); a('s_mul_i32 s55, s12, 448'); a('s_add_u32 s56, s56, s55'); a('s_add_u32 s56, s56, 0x%x' % WS_DN)
        a('s_mov_b32 s64, 0xffff0000'); a('s_mov_b32 s65, 0')
        a('s_mov_b32 s66, 0'); a('s_mov_b32 s67, 0xffff')
        a('s_mov_b32 s68, 0'); a('s_mov_b32 s69, 0xffff0000')
        a('s_mov_b32 s59, %s' % fhex(-LOG2E))
        R = 24
        self.poll_sent(['buffer_load_dwordx4 v[%d:%d], v5, s[8:11], s%d offen offset:%d sc1' % (R+4*i, R+3+4*i, 53 + i//4, ((i//2) % 2)*1792 + (i % 2)*16) for i in range(8)], 32, R)
        self.stamp(9)
        for st in (16, 8):
            for i in range(0, st, 2):
                a('v_pk_add_f32 v[%d:%d], v[%d:%d], v[%d:%d]' % (R+i, R+i+1, R+i, R+i+1, R+st+i, R+st+i+1))
        a('ds_write_b128 v10, v[%d:%d] offset:%d' % (R, R+3, L_RED))
        a('ds_write_b128 v10, v[%d:%d] offset:%d' % (R+4, R+7, L_RED+1024))
        a('s_waitcnt lgkmcnt(0)')
        a('s_barrier')
        self.stamp(10)
        for w in range(4):
            for u in range(2):
                a('ds_read_b128 v[%d:%d], v11 offset:%d' % (R+8*w+4*u, R+8*w+4*u+3, L_RED + w*2048 + u*1024))
        a('s_waitcnt lgkmcnt(4)')
        for i in range(0, 8, 2): a('v_pk_add_f32 v[%d:%d], v[%d:%d], v[%d:%d]' % (R+i, R+i+1, R+i, R+i+1, R+8+i, R+9+i))
        a('s_waitcnt lgkmcnt(0)')
        for i in range(0, 8, 2): a('v_pk_add_f32 v[%d:%d], v[%d:%d], v[%d:%d]' % (R+16+i, R+17+i, R+16+i, R+17+i, R+24+i, R+25+i))
        for i in range(0, 8, 2): a('v_pk_add_f32 v[%d:%d], v[%d:%d], v[%d:%d]' % (R+i, R+i+1, R+i, R+i+1, R+16+i, R+17+i))
        for i in range(0, 8, 2): a('v_pk_fma_f32 v[%d:%d], v[%d:%d], v[%d:%d], v[%d:%d]' % (R+i, R+i+1, R+i, R+i+1, 224+i, 225+i, 248+i, 249+i))
        a('v_readfirstlane_b32 s53, v%d' % R)
        for i in range(8): a('v_subrev_f32 v%d, s53, v%d' % (R+i, R+i))
        a('v_pk_add_f32 v[40:41], v[%d:%d], v[%d:%d]' % (R, R+1, R+2, R+3))
        a('v_pk_mul_f32 v[42:43], v[%d:%d], v[%d:%d]' % (R, R+1, R, R+1))
        a('v_pk_add_f32 v[40:41], v[40:41], v[%d:%d]' % (R+4, R+5))
        a('v_pk_fma_f32 v[42:43], v[%d:%d], v[%d:%d], v[42:43]' % (R+2, R+3, R+2, R+3))
        a('v_pk_add_f32 v[40:41], v[40:41], v[%d:%d]' % (R+6, R+7))
        a('v_pk_fma_f32 v[42:43], v[%d:%d], v[%d:%d], v[42:43]' % (R+4, R+5, R+4, R+5))
        a('v_add_f32 v40, v40, v41')
        a('v_pk_fma_f32 v[42:43], v[%d:%d], v[%d:%d], v[42:43]' % (R+6, R+7, R+6, R+7))
        a('v_cndmask_b32 v40, 0, v40, s[62:63]')
        a('v_add_f32 v42, v42, v43')
        a('v_cndmask_b32 v42, 0, v42, s[62:63]')
        a('v_permlane32_swap_b32 v40, v42')
        a('v_add_f32 v40, v40, v42')
        a('v_mov_b32 v42, v40'); a('v_permlane16_swap_b32 v40, v42'); a('v_add_f32 v40, v40, v42')
        for r in (8, 4, 2, 1): a('v_add_f32_dpp v40, v40, v40 row_ror:%d %s' % (r, DPPM))
        a('v_mul_f32 v40, %s, v40' % fhex(1.0/448))
        a('v_mov_b32 v42, v40'); a('v_permlane32_swap_b32 v40, v42')
        a('v_fma_f32 v42, -v40, v40, v42')
        a('v_max_f32 v42, 0, v42')
        a('v_add_f32 v42, %s, v42' % fhex(1e-5))
        a('v_rsq_f32 v42, v42')
        for i in range(8): a('v_sub_f32 v%d, v%d, v40' % (R+i, R+i))
        a('v_mov_b32 v43, v42')
        for i in range(0, 8, 2): a('v_pk_mul_f32 v[%d:%d], v[%d:%d], v[42:43]' % (R+i, R+i+1, R+i, R+i+1))
        for i in range(0, 8, 2): a('v_pk_fma_f32 v[%d:%d], v[%d:%d], v[%d:%d], v[%d:%d]' % (R+i, R+i+1, R+i, R+i+1, 240+i, 241+i, 232+i, 233+i))
        for i in range(4): a('v_cvt_pk_bf16_f32 v%d, v%d, v%d' % (20+i, R+2*i, R+2*i+1))
        a('ds_write_b128 v12, v[20:23] offset:%d' % L_AV)
        self.stamp(11)
        self.mfma_chain(14, 13, L_AV, 64, A, B, Dr)
        a('v_mul_f32 v20, s59, v%d' % Dr)
        a('v_exp_f32 v20, v20')
        a('v_mul_f32_dpp v21, v%d, v%d row_ror:8 %s' % (Dr, Dr, DPPM))
        a('v_add_f32 v20, 1.0, v20')
        a('v_rcp_f32 v20, v20')
        a('s_mov_b64 exec, 0xff')
        a('v_mul_f32 v20, v20, v21')
        a('v_cvt_pk_bf16_f32 v20, v20, v20')
        a('ds_write_b16 v15, v20 offset:%d' % L_ACTV)
        a('s_mov_b64 exec, -1')
        a('s_waitcnt lgkmcnt(0)')
        a('s_barrier')
        self.stamp(12)
        a('ds_read_b128 v[20:23], v14 offset:%d' % L_ACTV)
        a('s_waitcnt lgkmcnt(0)')
        for t in range(7):
            a('v_mfma_f32_16x16x32_bf16 v[%d:%d], v[20:23], v[%d:%d], 0' % (A+4*t, A+4*t+3, B2+4*t, B2+4*t+3))
        a('v_cndmask_b32 v24, v%d, v%d, s[64:65]' % (A, A+4))
        a('v_cndmask_b32 v24, v24, v%d, s[66:67]' % (A+8))
        a('v_cndmask_b32 v24, v24, v%d, s[68:69]' % (A+12))
        a('v_min_u32 v24, 0xfffffffe, v24')
        a('buffer_store_dword v24, v9, s[8:11], s56 offen sc1')
        a('v_cndmask_b32 v25, v%d, v%d, s[64:65]' % (A+16, A+20))
        a('v_cndmask_b32 v25, v25, v%d, s[66:67]' % (A+24))
        a('v_min_u32 v25, 0xfffffffe, v25')
        a('s_mov_b32 exec_hi, 0xffff')
        a('buffer_store_dword v25, v9, s[8:11], s56 offen offset:256 sc1')
        a('s_mov_b64 exec, -1')
        self.stamp(13)

    def tags(self):
        a = self.a
        a('v_readfirstlane_b32 s61, v1')
        a('s_add_u32 s61, s61, 1')
        a('s_and_b32 s14, s61, 0xffff')
        a('s_xor_b32 s15, s14, 0x8000')

    def red16(self, R):
        a = self.a
        a('v_permlane32_swap_b32 v%d, v%d' % (R, R+1)); a('v_permlane32_swap_b32 v%d, v%d' % (R+2, R+3))
        a('v_add_f32 v%d, v%d, v%d' % (R, R, R+1)); a('v_add_f32 v%d, v%d, v%d' % (R+2, R+2, R+3))
        a('v_permlane16_swap_b32 v%d, v%d' % (R, R+2))
        a('v_add_f32 v%d, v%d, v%d' % (R, R, R+2))
        a('v_add_f32_dpp v%d, v%d, v%d row_ror:4 %s' % (R, R, R, DPPM))
        a('v_add_f32_dpp v%d, v%d, v%d row_ror:8 %s' % (R, R, R, DPPM))

    def exit(self):
        a = self.a
        a('L_exit:')
        if self.prof:
            self.stamp(15)
            a('s_mov_b64 exec, -1')
            a('s_waitcnt lgkmcnt(0)')
            a('s_getreg_b32 s98, hwreg(HW_REG_XCC_ID, 0, 4)')
            a('v_mov_b32 v4, 0')
            for i in range(16): a('v_writelane_b32 v4, s%d, %d' % (70+2*i, i))
            a('v_lshlrev_b32 v5, 2, v3')
            a('s_lshl_b32 s53, s2, 3'); a('s_add_u32 s53, s53, s3'); a('s_lshl_b32 s53, s53, 6'); a('s_add_u32 s53, s53, 0x%x' % WS_DBG)
            a('s_mov_b64 exec, 0xffff')
            a('buffer_store_dword v4, v5, s[8:11], s53 offen')
        a('L_end:')

    def build(self):
        self.entry(); self.spath(); self.hpath(); self.exit()
        hdr = open(REF).read()
        i = hdr.index('; Override launch'); j = hdr.index('.amdgcn_target')
        s = hdr[:i] + '; @launch grid=(256,1,1) block=(512,1,1) lds=%d\n' % L_TOTAL + hdr[j:]
        i = s.index('    ; v1 = byte offset'); j = s.index('s_endpgm')
        return s[:i] + self.a.text() + s[j:]


if __name__ == '__main__':
    kw = eval('dict(%s)' % (sys.argv[2] if len(sys.argv) > 2 else ''))
    open(sys.argv[1], 'w').write(Gen(**kw).build())
```
